```python
import torch

def _softmax(x, axis=-1):
    return torch.softmax(x, dim=axis)
def _gelu(x):
    return torch.nn.functional.gelu(x, approximate="tanh")
def _silu(x):
    return torch.nn.functional.silu(x)
def _sigmoid(x):
    return torch.sigmoid(x)
def _layernorm(x, axis=-1, eps=1e-5):
    m = x.mean(dim=axis, keepdim=True)
    v = x.var(dim=axis, keepdim=True, unbiased=False)
    return (x - m) / torch.sqrt(v + eps)
def _scatter_add(tgt, idx, src, axis=0):
    return tgt.clone().index_add_(axis, idx, src)
def _segment_sum(src, seg, n):
    out = torch.zeros((n,) + src.shape[1:], dtype=src.dtype)
    return out.index_add_(0, seg, src)
def _pad(x, pw):
    flat = tuple(v for pair in reversed(pw) for v in pair)
    return torch.nn.functional.pad(x, flat)

kernel_name = 'standalone__gqa_block_cached__near_ridge'

def setup_inputs():

    _w = (lambda a: (lambda t: t.to(torch.bfloat16) if t.is_floating_point() else t)(torch.as_tensor(a)))
    B, Sq, D = 32, 48, 448
    Hq, Hkv, Sk, Dh = 16, 8, 512, 256
    assert Hq % Hkv == 0, (Hq, Hkv)
    return {
        "x": _w((lambda *s: torch.randn(*s, dtype=torch.bfloat16) * 0.8)(B, Sq, D)),
        "k_cache": _w((lambda *s: torch.randn(*s, dtype=torch.bfloat16) * 0.8)(B, Hkv, Sk, Dh)),
        "v_cache": _w((lambda *s: torch.randn(*s, dtype=torch.bfloat16) * 0.05)(B, Hkv, Sk, Dh)),
        "wq": _w((lambda *s: torch.randn(*s, dtype=torch.bfloat16) * 0.8)(D, Hq * Dh) * (D ** -0.5)),
        "wo": _w((lambda *s: torch.randn(*s, dtype=torch.bfloat16) * 0.05)(Hq * Dh, D) * ((Hq * Dh) ** -0.5)),
    }

def reference(x, k_cache, v_cache, wq, wo):
    B, Sq, D = x.shape
    Hq, Dh = 16, 256
    Hkv = k_cache.shape[1]
    rep = Hq // Hkv
    q = (lambda x, *d: x.permute(*d))((x @ wq).reshape(B, Sq, Hq, Dh), 0, 2, 1, 3)
    k = (lambda x, n, axis: torch.repeat_interleave(x, n, dim=axis))(k_cache, rep, axis=1)
    v = (lambda x, n, axis: torch.repeat_interleave(x, n, dim=axis))(v_cache, rep, axis=1)
    scores = torch.einsum("bhqd,bhkd->bhqk", q, k) * (Dh ** -0.5)
    p = _softmax(scores, axis=-1)
    o = torch.einsum("bhqk,bhkd->bhqd", p, v)
    return (lambda x, *d: x.permute(*d))(o, 0, 2, 1, 3).reshape(B, Sq, Hq * Dh) @ wo
```

```python
import re

def regs_of(tok):
    tok = tok.strip()
    neg = tok.lstrip('-')
    m = re.fullmatch(r'([vas])(\d+)', neg)
    if m: return {(m.group(1), int(m.group(2)))}
    m = re.fullmatch(r'([vas])\[(\d+):(\d+)\]', neg)
    if m: return {(m.group(1), i) for i in range(int(m.group(2)), int(m.group(3)) + 1)}
    if neg in ('vcc', 'exec', 'm0'): return {(neg, 0)}
    return set()

TRANS = ('v_exp_f32', 'v_log_f32', 'v_rcp_f32', 'v_rsq_f32', 'v_sqrt_f32')

def parse(text):
    t = text.split(';')[0].strip()
    t = re.sub(r'\s(op_sel|op_sel_hi|neg_lo|neg_hi):\[[^\]]*\]', '', t)
    mn, _, rest = t.partition(' ')
    ops = [o.strip() for o in rest.split(',')] if rest else []
    if ops:
        last = ops[-1].split()
        mods = last[1:]
        ops[-1] = last[0] if last else ''
    else: mods = []
    R = [regs_of(o.split()[0]) if o else set() for o in ops]
    kind = 'other'; rd = set(); wr = set(); srcc = set()
    if mn.startswith('v_mfma'):
        kind = 'mfma'; wr = R[0]; rd = R[1] | R[2] | R[3]; srcc = R[3]
    elif mn.startswith('ds_read'):
        kind = 'dsr'; wr = R[0]; rd = R[1]
    elif mn.startswith('ds_write'):
        kind = 'dsw'; rd = set().union(*R)
    elif mn.startswith('buffer_load') or mn.startswith('global_load'):
        if ' lds' in t: kind = 'dma'; rd = set().union(*R) | {('m0', 0)}
        else: kind = 'vld'; wr = R[0]; rd = set().union(*R[1:])
    elif mn.startswith('buffer_store') or mn.startswith('global_store'):
        kind = 'vst'; rd = set().union(*R)
    elif mn.startswith('buffer_atomic'):
        kind = 'vst'; rd = set().union(*R)
        if 'sc0' in t: kind = 'vld'; wr = R[0]
    elif mn.startswith('v_permlane'):
        kind = 'perm'; wr = R[0] | R[1]; rd = R[0] | R[1]
    elif mn.startswith('v_readfirstlane') or mn.startswith('v_readlane'):
        kind = 'rdlane'; wr = R[0]; rd = set().union(*R[1:])
    elif mn.startswith('v_'):
        kind = 'trans' if mn.replace('_e32', '').replace('_e64', '') in TRANS else 'valu'
        wr = R[0]; rd = set().union(*R[1:]) if len(R) > 1 else set()
        if mn.startswith(('v_fmac', 'v_writelane', 'v_pk_fmac')): rd |= R[0]
        if mn.startswith('v_cndmask') and len(R) == 3: rd |= {('vcc', 0)}
        if '_dpp' in mn: kind = 'dpp'
    elif mn.startswith('s_'):
        kind = 'salu'
        if mn.startswith(('s_cmp', 's_cbranch', 's_branch', 's_waitcnt', 's_nop', 's_barrier', 's_endpgm', 's_setprio', 's_sleep', 's_bitcmp')):
            rd = set().union(*R) if R else set()
        else:
            wr = R[0] if R else set(); rd = set().union(*R[1:]) if len(R) > 1 else set()
            if 'saveexec' in mn: wr |= {('exec', 0)}
    return mn, kind, rd, wr, srcc

VALU = ('valu', 'trans', 'perm', 'rdlane', 'dpp')
def passes(mn): return 8 if '32x32' in mn else 4

class Stream:
    def __init__(self):
        self.L = []
        self.lg = []
        self.vm = []
        self.hist = []
        self.n_nop = 0
    def raw(self, t): self.L.append(t)
    def label(self, n): self.L.append(n + ':')
    def _age(self, k):
        for h in self.hist: h[0] += k
        self.hist = [h for h in self.hist if h[0] < 24]
    def _need(self, mn, kind, rd, wr, srcc):
        need = 0
        for age, pmn, pk, prd, pwr, psc in self.hist:
            w = 0
            vw = {r for r in pwr if r[0] in 'va'}
            sw = {r for r in pwr if r[0] in ('s', 'vcc')}
            if pk == 'mfma':
                p = passes(pmn)
                if kind == 'mfma':
                    if srcc & pwr and srcc != pwr: w = max(w, p + 2)
                    if (rd - srcc) & pwr: w = max(w, p + 4)
                    if wr & pwr and srcc != pwr: w = max(w, p + 2)
                elif (rd | wr) & pwr: w = max(w, p + 4)
                if kind in VALU and wr & psc: w = max(w, p - 1)
            if pk in VALU:
                if kind == 'mfma' and rd & vw: w = max(w, 2)
                if kind == 'mfma' and ('exec', 0) in pwr: w = max(w, 4)
                if kind in ('perm', 'dpp') and rd & vw: w = max(w, 2)
                if kind == 'rdlane' and rd & vw: w = max(w, 1)
                if kind in ('dma', 'vld', 'vst') and rd & sw: w = max(w, 5)
                if kind in VALU and rd & sw: w = max(w, 4 if mn.startswith(('v_readlane', 'v_writelane')) else 2)
                if kind == 'salu' and rd & sw and not mn.startswith('s_cbranch'): w = max(w, 1)
            if pk == 'trans' and kind in VALU + ('mfma',) and kind != 'trans' and rd & vw: w = max(w, 1)
            if pk == 'salu' and ('m0', 0) in pwr and (kind == 'dma' or ('m0', 0) in rd): w = max(w, 1)
            if pk == 'vst' and ('x3' in pmn or 'x4' in pmn) and wr & {r for r in prd if r[0] in 'va'}: w = max(w, 2)
            need = max(need, w - age)
        return need
    def nop(self, k):
        while k > 0:
            n = min(k, 16); self.L.append(f's_nop {n-1}'); self._age(n); k -= n; self.n_nop += 1
    def wait_lgkm(self, n):
        n = min(n, 15)
        if len(self.lg) > n:
            self.L.append(f's_waitcnt lgkmcnt({n})'); self._age(1)
            self.lg = self.lg[len(self.lg) - n:] if n else []
    def wait_vm(self, n, force=False):
        assert n <= 63
        if len(self.vm) > n or force:
            self.L.append(f's_waitcnt vmcnt({n})'); self._age(1)
            self.vm = self.vm[len(self.vm) - n:] if n else []
    def wait_tag(self, tag):
        idx = [i for i, (t, _) in enumerate(self.vm) if t == tag]
        if idx: self.wait_vm(len(self.vm) - 1 - idx[-1])
    def __call__(self, text, tag=None):
        for t in text.split('\n'):
            t = t.strip()
            if t: self.op(t, tag)
    def op(self, text, tag=None):
        if text.endswith(':'): self.L.append(text); return
        mn, kind, rd, wr, srcc = parse(text)
        touch = rd | wr
        for i in range(len(self.lg) - 1, -1, -1):
            if self.lg[i] & touch: self.wait_lgkm(len(self.lg) - 1 - i); break
        for i in range(len(self.vm) - 1, -1, -1):
            if self.vm[i][1] & touch: self.wait_vm(len(self.vm) - 1 - i); break
        k = self._need(mn, kind, rd, wr, srcc)
        if k > 0: self.nop(k)
        self.L.append(text)
        if mn == 's_nop': self._age(int(text.split()[1]) + 1)
        else: self._age(1)
        if mn == 's_waitcnt':
            m = re.search(r'lgkmcnt\((\d+)\)', text)
            if m:
                n = int(m.group(1)); self.lg = self.lg[max(0, len(self.lg) - n):] if n else []
            m = re.search(r'vmcnt\((\d+)\)', text)
            if m:
                n = int(m.group(1)); self.vm = self.vm[max(0, len(self.vm) - n):] if n else []
        self.hist.append([0, mn, kind, rd, wr, srcc])
        if kind == 'dsr': self.lg.append(set(wr))
        elif kind == 'dsw': self.lg.append(set())
        elif kind in ('dma', 'vst'): self.vm.append((tag, set()))
        elif kind == 'vld': self.vm.append((tag, set(wr)))
        assert len(self.vm) <= 63, "vmcnt overflow"
    def cond_begin(self):
        assert not self.lg or True
        self.wait_lgkm(0)
        self._snap = [list(h) for h in self.hist]
        self._nvm = len(self.vm)
    def cond_end(self):
        assert len(self.vm) == self._nvm, "no vmem inside conditional blocks"
        self.hist += self._snap
    def text(self): return '\n'.join(self.L)

def v(i, n=1): return f'v{i}' if n == 1 else f'v[{i}:{i+n-1}]'
def s(i, n=1): return f's{i}' if n == 1 else f's[{i}:{i+n-1}]'
```

```python
import sys, math
from asmlib import Stream, v, s
NAME = "standalone__gqa_block_cached__near_ridge"
STAMP_OFF = 0x8000000

SLOT = [0, 32768, 65536]
WB = 98304
QB = 155648
FL = 161792
ST = 161856
XS = 32768
XR = SLOT[1]
TB = SLOT[2]
TP = 912
def kslot(p): return SLOT[p % 3]
def vslot(p): return SLOT[2] if p % 2 == 0 else SLOT[0]

sX, sK, sV, sWq, sWo, sWs, sOut, sDbg = 20, 24, 28, 32, 36, 40, 44, 48
sW, sJ, sOff, sB, sH, sSpin, sC, sT0, sT1, sSt = 52, 53, 54, 55, 56, 57, 58, 60, 61, 62
sT2, sT3 = 64, 65
MF = "v_mfma_f32_16x16x32_bf16"

class Cfg:
    kvpol = "nt"; wpol = ""; xpol = ""; stamps = False; fused = False
    pre = 4
    prio = None
    pf_w = True; pf_code = False
    def __init__(self, **k):
        for a, b in k.items():
            assert hasattr(self, a), a
            setattr(self, a, b)

class Role(Stream):
    def __init__(self, cls, ids, cfg, vFlag, vPoll, vT, vStamp):
        super().__init__()
        self.cls, self.ids, self.cfg = cls, ids, cfg
        self.vFlag, self.vPoll, self.vT, self.vStamp = vFlag, vPoll, vT, vStamp
        self.n = 0; self.ev = []; self.nl = 0; self.stn = []
    def signal(self, name):
        self.n += 1
        self.ids[(self.cls, name)] = self.n
        self.ev.append(('sig', name))
        self(f"v_mov_b32 {v(self.vT)}, {self.n}")
        self(f"ds_write_b32 {v(self.vFlag)}, {v(self.vT)}")
    def wait(self, cls, name, stamp=None):
        idn = self.ids.get((cls, name), 0)
        self.ev.append(('wait', cls, name))
        self.nl += 1
        lab = f"Lw{self.cls}{self.nl}"
        self.label(lab)
        self(f"ds_read_b32 {v(self.vT)}, {v(self.vPoll)} offset:{0 if cls == 'P' else 16}")
        self(f"s_sub_u32 {s(sSpin)}, {s(sSpin)}, 1")
        self("s_cbranch_scc1 L_end")
        self("s_waitcnt lgkmcnt(0)")
        self(f"v_cmp_gt_u32 vcc, {idn}, {v(self.vT)}")
        self(f"s_cbranch_vccnz {lab}")
        self.stamp(stamp or f"{cls}:{name}")
    def stamp(self, name):
        if not self.cfg.stamps or len(self.stn) >= 63: return
        self("s_waitcnt lgkmcnt(0)")
        self(f"s_memtime {s(sSt, 2)}")
        self("s_waitcnt lgkmcnt(0)")
        self(f"v_writelane_b32 {v(self.vStamp)}, {s(sSt)}, {len(self.stn)}")
        self.stn.append(name)
    def dma(self, voff, srd, soff, lds, pol, tag, sbase=sJ):
        self(f"s_add_u32 m0, {s(sbase)}, {lds}")
        self(f"s_mov_b32 {s(sOff)}, {soff}")
        self(f"buffer_load_dwordx4 {v(voff)}, {s(srd, 4)}, {s(sOff)} offen {pol} lds", tag)

def check_deadlock(P, A, ids):
    pos = {'P': 0, 'A': 0}; cnt = {'P': 0, 'A': 0}; ev = {'P': P.ev, 'A': A.ev}
    while True:
        prog = False
        for c in 'PA':
            while pos[c] < len(ev[c]):
                e = ev[c][pos[c]]
                if e[0] == 'sig': cnt[c] += 1
                else:
                    assert (e[1], e[2]) in ids, e
                    if cnt[e[1]] < ids[(e[1], e[2])]: break
                pos[c] += 1; prog = True
        if all(pos[c] == len(ev[c]) for c in 'PA'): return
        assert prog, ("deadlock", ev['P'][pos['P']:pos['P']+1], ev['A'][pos['A']:pos['A']+1])

def common_lane(E, vLane, vSw):
    E(f"v_and_b32 {v(vLane)}, 63, v0")
    E(f"v_lshrrev_b32 {v(vSw)}, 3, {v(vLane)}")
    E(f"v_and_b32 {v(vSw)}, 6, {v(vSw)}")
    E(f"v_xor_b32 {v(vSw)}, {v(vSw)}, {v(vLane)}")
    E(f"v_and_b32 {v(vSw)}, 7, {v(vSw)}")
    E(f"v_lshlrev_b32 {v(vSw)}, 4, {v(vSw)}")

def tr_base(E, dst, vLane, t1, t2, gmul):
    E(f"v_lshrrev_b32 {v(t1)}, 5, {v(vLane)}")
    E(f"v_mul_u32_u24 {v(dst)}, {gmul}, {v(t1)}")
    E(f"v_bfe_u32 {v(t1)}, {v(vLane)}, 2, 3")
    E(f"v_lshl_add_u32 {v(dst)}, {v(t1)}, 7, {v(dst)}")
    E(f"v_bfe_u32 {v(t1)}, {v(vLane)}, 3, 2")
    E(f"v_lshl_add_u32 {v(dst)}, {v(t1)}, 5, {v(dst)}")
    E(f"v_and_b32 {v(t1)}, 3, {v(vLane)}")
    E(f"v_lshl_add_u32 {v(dst)}, {v(t1)}, 3, {v(dst)}")

def b128_base(E, dst, vLane, t1, t2):
    E(f"v_and_b32 {v(t1)}, 15, {v(vLane)}")
    E(f"v_lshlrev_b32 {v(dst)}, 7, {v(t1)}")
    E(f"v_and_b32 {v(t1)}, 6, {v(vLane)}")
    E(f"v_lshrrev_b32 {v(t2)}, 4, {v(vLane)}")
    E(f"v_xor_b32 {v(t1)}, {v(t1)}, {v(t2)}")
    E(f"v_lshl_add_u32 {v(dst)}, {v(t1)}, 4, {v(dst)}")

def final_store(E, cfg, vLane, vA, vG, tmp):
    E(f"s_mul_i32 {s(sT0)}, {s(sW)}, {6*TP}")
    E(f"s_add_u32 {s(sT0)}, {s(sT0)}, {TB}")
    E(f"v_lshlrev_b32 {v(vG)}, 4, {v(vLane)}")
    E(f"v_add_u32 {v(vA)}, {s(sT0)}, {v(vG)}")
    E(f"s_mul_i32 {s(sT0)}, {s(sW)}, {6*896}")
    E(f"v_add_u32 {v(vG)}, {s(sT0)}, {v(vG)}")
    E.wait('P', 'Tw')
    E("s_mov_b32 exec_hi, 0x00ffffff")
    for r in range(6): E(f"ds_read_b128 {v(tmp+4*r, 4)}, {v(vA)} offset:{r*TP}")
    E(f"s_mov_b32 {s(sT0)}, {4*896}")
    for r in range(6):
        if r < 4: E(f"buffer_store_dwordx4 {v(tmp+4*r, 4)}, {v(vG)}, {s(sWs, 4)}, 0 offen offset:{r*896}")
        else: E(f"buffer_store_dwordx4 {v(tmp+4*r, 4)}, {v(vG)}, {s(sWs, 4)}, {s(sT0)} offen offset:{(r-4)*896}")
    E("s_mov_b32 exec_hi, -1")

def dump_stamps(E, cfg, vLane, t):
    if not cfg.stamps: return
    E.wait_vm(0)
    E.stamp("end")
    E(f"s_memrealtime {s(sSt, 2)}\ns_waitcnt lgkmcnt(0)\nv_writelane_b32 {v(E.vStamp)}, {s(sSt)}, 63")
    E(f"s_lshl_b32 {s(sT0)}, s2, 3\ns_add_u32 {s(sT0)}, {s(sT0)}, {s(sW)}\ns_lshl_b32 {s(sT0)}, {s(sT0)}, 8")
    E(f"s_add_u32 {s(sOut)}, s18, {STAMP_OFF}\ns_addc_u32 {s(sOut+1)}, s19, 0\ns_and_b32 {s(sOut+1)}, {s(sOut+1)}, 0xffff")
    E(f"s_mov_b32 {s(sOut+2)}, {256*8*256}\ns_mov_b32 {s(sOut+3)}, 0x20000")
    E(f"v_lshlrev_b32 {v(t)}, 2, {v(vLane)}")
    E(f"buffer_store_dword {v(E.vStamp)}, {v(t)}, {s(sOut, 4)}, {s(sT0)} offen")

def gen_proj(cfg, ids):
    vLane, vSw, vKV, vWq, vWo, vWqRd, vQwr, vFlag, vPoll, vT, vStamp, vA, vB2 = 1, 2, 3, 4, 5, 6, 7, 8, 9, 10, 11, 12, 13
    XF = 16; WA = 184; QA = 240
    OUT = 16; OF = 100; WBs = 128; WR = 240
    vOr, vTw = 247, 248
    E = Role('P', ids, cfg, vFlag, vPoll, vT, vStamp)
    E(f"s_sub_u32 {s(sT0)}, {s(sW)}, 4")
    E(f"s_lshl_b32 {s(sJ)}, {s(sT0)}, 10")
    common_lane(E, vLane, vSw)
    E(f"v_lshrrev_b32 {v(vA)}, 3, {v(vLane)}")
    E(f"v_lshl_add_u32 {v(vKV)}, {v(vA)}, 9, {v(vSw)}")
    E(f"s_lshl_b32 {s(sT1)}, {s(sT0)}, 12")
    E(f"v_add_u32 {v(vKV)}, {s(sT1)}, {v(vKV)}")
    def issueK(p, lo=0, hi=8):
        for i in range(lo, hi):
            if p < 8: E.dma(vKV, sK, ((p & 1) * 256 + 32 * i) * 512 + (p >> 1) * 128, kslot(p) + 4096 * i, cfg.kvpol, f"K{p}")
            else:
                q = p - 8
                E.dma(vKV, sV, ((q & 1) * 256 + 32 * i) * 512 + (q >> 1) * 128, vslot(q) + 4096 * i, cfg.kvpol, f"K{p}")
    def issueW(p, lo=0, hi=14):
        for i in range(lo, hi):
            if p < 8: E.dma(vWq, sWq, 32 * i * 8192 + (p & 1) * 512 + (p >> 1) * 128, WB + 4096 * i, cfg.wpol, f"W{p}")
            else:
                q = p - 8
                E.dma(vWo, sWo, ((q & 1) * 256 + 64 * (q >> 1) + 32 * (i // 7)) * 896 + (i % 7) * 128, WB + 4096 * i, cfg.wpol, f"W{p}")
    issueK(0)
    E(f"v_and_b32 {v(vB2)}, 4, {v(vA)}")
    E(f"v_add_u32 {v(vB2)}, {v(vB2)}, {v(vA)}")
    E(f"s_lshr_b32 {s(sT1)}, {s(sT0)}, 1\ns_lshl_b32 {s(sT1)}, {s(sT1)}, 4")
    E(f"s_and_b32 {s(sT2)}, {s(sT0)}, 1\ns_lshl_b32 {s(sT2)}, {s(sT2)}, 2\ns_add_u32 {s(sT1)}, {s(sT1)}, {s(sT2)}")
    E(f"v_add_u32 {v(vB2)}, {s(sT1)}, {v(vB2)}")
    E(f"v_lshl_add_u32 {v(vWq)}, {v(vB2)}, 13, {v(vSw)}")
    E(f"s_lshl_b32 {s(sT1)}, {s(sT0)}, 2\ns_add_u32 {s(sT1)}, {s(sT1)}, {FL}")
    E(f"v_mov_b32 {v(vFlag)}, {s(sT1)}\nv_mov_b32 {v(vT)}, 0\nds_write_b32 {v(vFlag)}, {v(vT)}")
    E(f"v_and_b32 {v(vPoll)}, 3, {v(vLane)}\nv_lshlrev_b32 {v(vPoll)}, 2, {v(vPoll)}\nv_add_u32 {v(vPoll)}, {FL}, {v(vPoll)}")
    E("s_waitcnt lgkmcnt(0)\ns_barrier")
    E.stamp("start")
    issueW(0)
    E(f"s_lshl_b32 {s(sT1)}, {s(sT0)}, 3\nv_add_u32 {v(vB2)}, {s(sT1)}, {v(vA)}")
    E(f"v_mul_u32_u24 {v(vWo)}, 896, {v(vB2)}\nv_add_u32 {v(vWo)}, {v(vWo)}, {v(vSw)}")
    tr_base(E, vWqRd, vLane, vA, vB2, 2048)
    E(f"s_lshl_b32 {s(sT1)}, {s(sT0)}, 5\nv_xor_b32 {v(vWqRd)}, {s(sT1)}, {v(vWqRd)}\nv_add_u32 {v(vWqRd)}, {WB}, {v(vWqRd)}")
    E(f"v_and_b32 {v(vA)}, 15, {v(vLane)}\nv_lshlrev_b32 {v(vQwr)}, 4, {v(vA)}")
    E(f"v_lshrrev_b32 {v(vA)}, 5, {v(vLane)}\nv_lshl_add_u32 {v(vQwr)}, {v(vA)}, 8, {v(vQwr)}")
    E(f"v_bfe_u32 {v(vA)}, {v(vLane)}, 4, 1\nv_lshl_add_u32 {v(vQwr)}, {v(vA)}, 3, {v(vQwr)}")
    E(f"s_lshr_b32 {s(sT1)}, {s(sT0)}, 1\ns_mul_i32 {s(sT1)}, {s(sT1)}, 3072")
    E(f"s_and_b32 {s(sT2)}, {s(sT0)}, 1\ns_lshl_b32 {s(sT2)}, {s(sT2)}, 9\ns_add_u32 {s(sT1)}, {s(sT1)}, {s(sT2)}\ns_add_u32 {s(sT1)}, {s(sT1)}, {QB}")
    E(f"v_add_u32 {v(vQwr)}, {s(sT1)}, {v(vQwr)}")
    b128_base(E, vA, vLane, vB2, vT)
    E(f"v_add_u32 {v(vA)}, {XS}, {v(vA)}\nv_xor_b32 {v(vB2)}, 64, {v(vA)}")
    E.wait('A', 'xl')
    for ks in range(14):
        for t in range(3):
            E(f"ds_read_b128 {v(XF + (ks*3+t)*4, 4)}, {v(vB2 if ks & 1 else vA)} offset:{(ks >> 1)*6144 + t*2048}")
    def w_landed(p):
        E.wait_tag(f"W{p}")
        E.signal(f"Wl{p}"); E.wait('P', f"Wl{p}")
    for p in range(8):
        w_landed(p)
        for i in range(14):
            for hf in range(2):
                E(f"ds_read_b64_tr_b16 {v(WA + 4*i + 2*hf, 2)}, {v(vWqRd)} offset:{i*4096 + hf*1024}")
        E.signal(f"Wr{p}"); E.wait('P', f"Wr{p}")
        nxt = p + 1 if p < 7 else None
        if nxt: issueW(nxt, 0, cfg.pre)
        for i in range(14):
            for t in range(3):
                E(f"{MF} {v(QA+4*t, 4)}, {v(WA+4*i, 4)}, {v(XF+(i*3+t)*4, 4)}, {v(QA+4*t, 4) if i else 0}")
        if p: E.wait('A', f"Qr{p-1}")
        for t in range(3):
            E(f"v_cvt_pk_bf16_f32 {v(QA+4*t)}, {v(QA+4*t)}, {v(QA+4*t+1)}")
            E(f"v_cvt_pk_bf16_f32 {v(QA+4*t+1)}, {v(QA+4*t+2)}, {v(QA+4*t+3)}")
            E(f"ds_write_b64 {v(vQwr)}, {v(QA+4*t, 2)} offset:{t*1024}")
        E.signal(f"Qw{p}")
        if nxt:
            issueW(nxt, cfg.pre, 14)
            E.wait_tag(f"K{p}"); E.signal(f"Kl{p}")
            if p >= 2: E.wait('A', f"Kc{p-2}")
            issueK(p + 1)
    E.wait('A', "Kc5")
    issueK(8)
    E.wait_tag("K7"); E.signal("Kl7")
    tr_base(E, vA, vLane, vB2, vT, 1024)
    E(f"s_lshr_b32 {s(sT0)}, {s(sJ)}, 10\ns_mul_i32 {s(sT0)}, {s(sT0)}, 7")
    for i in range(7):
        E(f"s_add_u32 {s(sT1)}, {s(sT0)}, {i}\ns_and_b32 {s(sT2)}, {s(sT1)}, 3\ns_lshl_b32 {s(sT2)}, {s(sT2)}, 5")
        E(f"s_lshr_b32 {s(sT1)}, {s(sT1)}, 2\ns_lshl_b32 {s(sT1)}, {s(sT1)}, 12\ns_add_u32 {s(sT1)}, {s(sT1)}, {WB}")
        E(f"v_xor_b32 {v(WR+i)}, {s(sT2)}, {v(vA)}\nv_add_u32 {v(WR+i)}, {s(sT1)}, {v(WR+i)}")
    E(f"v_lshlrev_b32 {v(vOr)}, 4, {v(vLane)}\nv_add_u32 {v(vOr)}, {XR}, {v(vOr)}")
    E(f"v_and_b32 {v(vA)}, 15, {v(vLane)}\nv_mul_u32_u24 {v(vTw)}, {TP}, {v(vA)}")
    E(f"v_lshrrev_b32 {v(vA)}, 4, {v(vLane)}\nv_lshl_add_u32 {v(vTw)}, {v(vA)}, 3, {v(vTw)}")
    E(f"s_lshl_b32 {s(sT0)}, {s(sT0)}, 5\ns_add_u32 {s(sT0)}, {s(sT0)}, {TB}\nv_add_u32 {v(vTw)}, {s(sT0)}, {v(vTw)}")
    issueW(8)
    E.wait_tag("K8"); E.signal("Kl8")
    E.wait('A', "Kc6")
    issueK(9)
    def wset(q): return WA if q % 2 == 0 else WBs
    def read_of(q, dst):
        h = q & 1
        for ks in range(2):
            for t in range(3):
                E(f"ds_read_b128 {v(dst + (ks*3+t)*4, 4)}, {v(vOr)} offset:{(h*2 + (ks ^ 1))*6144 + t*1024}")
    def oproj(q, of, last=False, hook=None):
        for i in range(7):
            for ks in range(2):
                for t in range(3):
                    acc = v(OUT + (i*3+t)*4, 4)
                    E(f"{MF} {acc}, {v(wset(q) + (ks*7+i)*4, 4)}, {v(of + (ks*3+t)*4, 4)}, {acc if (q or ks) else 0}")
            if hook: hook(i)
    for q in range(8):
        p = 8 + q
        w_landed(p)
        for i in range(7):
            for ks in range(2):
                for hf in range(2):
                    E(f"ds_read_b64_tr_b16 {v(wset(q) + (ks*7+i)*4 + 2*hf, 2)}, {v(WR+i)} offset:{ks*28672 + hf*2048}")
        E.signal(f"Wr{p}"); E.wait('P', f"Wr{p}")
        if q < 7: issueW(p + 1, 0, cfg.pre)
        if q >= 1:
            if q & 1: E.wait('A', f"Ow{q >> 1}")
            read_of(q - 1, OF)
            if not (q & 1): E.signal(f"Or{(q - 1) >> 1}")
            oproj(q - 1, OF)
        if q < 7:
            issueW(p + 1, cfg.pre, 14)
            E.wait_tag(f"K{p+1}"); E.signal(f"Kl{p+1}")
            if q < 6:
                E.wait('A', f"Kc{p}")
                issueK(p + 2)
    read_of(7, WA)
    def fin(i):
        if i == 0: return
        emit_T(i - 1)
    def emit_T(i):
        for t in range(3):
            a = OUT + (i*3+t)*4
            E(f"v_cvt_pk_bf16_f32 {v(a)}, {v(a)}, {v(a+1)}")
            E(f"v_cvt_pk_bf16_f32 {v(a+1)}, {v(a+2)}, {v(a+3)}")
            E(f"ds_write_b64 {v(vTw)}, {v(a, 2)} offset:{t*16*TP + i*32}")
    oproj(7, WA, hook=fin)
    emit_T(6)
    E.signal("Tw")
    final_store(E, cfg, vLane, vA, vB2, WBs)
    dump_stamps(E, cfg, vLane, vA)
    E("s_endpgm")
    return E

def gen_attn(cfg, ids):
    vLane, vSw, vK0, vK1, vK2, vK3, vQr, vFlag, vPoll, vT, vStamp, vA, vB2 = 1, 2, 3, 4, 5, 6, 7, 8, 9, 10, 11, 12, 13
    vM = 14
    S0 = 16; QF = 208; KF = 232; NKF = 6
    def S(T, t, r=0): return S0 + (T*3 + t)*4 + r
    E = Role('A', ids, cfg, vFlag, vPoll, vT, vStamp)
    common_lane(E, vLane, vSw)
    E(f"v_lshrrev_b32 {v(vA)}, 3, {v(vLane)}")
    if cfg.pf_w:
        E(f"s_and_b32 {s(sT0)}, {s(sW)}, 1\ns_lshl_b32 {s(sT1)}, {s(sB)}, 1\ns_add_u32 {s(sT0)}, {s(sT0)}, {s(sT1)}\ns_mul_i32 {s(sT0)}, {s(sT0)}, 7")
        E(f"v_and_b32 {v(vB2)}, 7, {v(vLane)}\nv_lshlrev_b32 {v(vB2)}, 7, {v(vB2)}\nv_lshl_add_u32 {v(vB2)}, {v(vA)}, 13, {v(vB2)}")
        E(f"v_lshlrev_b32 {v(vT)}, 7, {v(vLane)}")
        E(f"s_lshl_b32 {s(sT1)}, {s(sT0)}, 13\ns_lshl_b32 {s(sT2)}, {s(sT0)}, 10")
        E("s_mov_b32 exec_hi, 0x00ffffff")
        E(f"s_cmp_ge_u32 {s(sW)}, 2\ns_cbranch_scc1 L_pfo")
        E.raw(f"buffer_load_dword {v(vM)}, {v(vB2)}, {s(sWq, 4)}, {s(sT1)} offen\ns_branch L_pfd\nL_pfo:")
        E(f"buffer_load_dword {v(vM)}, {v(vT)}, {s(sWo, 4)}, {s(sT2)} offen")
        E.label("L_pfd")
        E("s_mov_b32 exec_hi, -1")
    E(f"v_mul_u32_u24 {v(vK0)}, 896, {v(vA)}\nv_add_u32 {v(vK0)}, {v(vK0)}, {v(vSw)}")
    E(f"s_mul_i32 {s(sT0)}, {s(sW)}, {8*896}\nv_add_u32 {v(vK1)}, {s(sT0)}, {v(vK0)}")
    E(f"s_lshl_b32 {s(sJ)}, {s(sW)}, 10")
    for jl in range(7): E.dma(vK1, sX, jl * 128, XS + jl * 6144, cfg.xpol, "x")
    E(f"s_lshr_b32 {s(sT0)}, {s(sW)}, 1\ns_add_u32 {s(sT0)}, {s(sT0)}, 4\ns_and_b32 {s(sT1)}, {s(sW)}, 1")
    E(f"s_lshl_b32 {s(sJ)}, {s(sT0)}, 10\ns_mul_i32 {s(sT2)}, {s(sT1)}, {3*6144}\ns_add_u32 {s(sJ)}, {s(sJ)}, {s(sT2)}")
    E(f"s_mul_i32 {s(sT0)}, {s(sT0)}, {8*896}\ns_mul_i32 {s(sT1)}, {s(sT1)}, 384\ns_add_u32 {s(sT0)}, {s(sT0)}, {s(sT1)}")
    E(f"v_add_u32 {v(vK1)}, {s(sT0)}, {v(vK0)}")
    for jl in range(4): E.dma(vK1, sX, jl * 128, XS + jl * 6144, cfg.xpol, "x")
    E(f"s_lshl_b32 {s(sT1)}, {s(sW)}, 2\ns_add_u32 {s(sT1)}, {s(sT1)}, {FL+16}")
    E(f"v_mov_b32 {v(vFlag)}, {s(sT1)}\nv_mov_b32 {v(vT)}, 0\nds_write_b32 {v(vFlag)}, {v(vT)}")
    E(f"v_and_b32 {v(vPoll)}, 3, {v(vLane)}\nv_lshlrev_b32 {v(vPoll)}, 2, {v(vPoll)}\nv_add_u32 {v(vPoll)}, {FL}, {v(vPoll)}")
    E("s_waitcnt lgkmcnt(0)\ns_barrier")
    E.stamp("start")
    b128_base(E, vK0, vLane, vA, vB2)
    E(f"s_and_b32 {s(sT0)}, {s(sW)}, 1\ns_lshl_b32 {s(sT0)}, {s(sT0)}, 14")
    E(f"v_add_u32 {v(vK0)}, {s(sT0)}, {v(vK0)}\nv_xor_b32 {v(vK1)}, 64, {v(vK0)}")
    E(f"v_add_u32 {v(vK2)}, 0x10000, {v(vK0)}\nv_add_u32 {v(vK3)}, 0x10000, {v(vK1)}")
    E(f"v_lshlrev_b32 {v(vQr)}, 4, {v(vLane)}\nv_add_u32 {v(vQr)}, {QB}, {v(vQr)}")
    E(f"s_lshr_b32 {s(sH)}, {s(sW)}, 1")
    c = math.log2(math.e) / 16.0
    import struct
    cb = struct.unpack('<I', struct.pack('<f', c))[0]
    E(f"s_mov_b32 {s(sC)}, {cb:#x}\ns_mov_b32 {s(sC+1)}, {cb:#x}")
    E.wait_vm(0)
    E.signal("xl")
    def qk(p):
        sl = kslot(p); half = p & 1
        items = [(kt, ss) for kt in range(8) for ss in range(2)]
        def rd(n):
            kt, ss = items[n]
            a = (vK2 if sl >= 65536 else vK0) + ss
            E(f"ds_read_b128 {v(KF + 4*(n % NKF), 4)}, {v(a)} offset:{(sl % 65536) + kt*2048}")
            if n == 15: E.signal(f"Kc{p}")
        for n in range(NKF): rd(n)
        for n, (kt, ss) in enumerate(items):
            for t in range(3):
                acc = v(S(half*8 + kt, t), 4)
                E(f"{MF} {acc}, {v(KF + 4*(n % NKF), 4)}, {v(QF + (ss*3+t)*4, 4)}, {acc if (p >= 2 or ss) else 0}")
            if n + NKF < 16: rd(n + NKF)
    def readq(p):
        E.cond_begin()
        E(f"s_cmp_lg_u32 {s(sH)}, {p & 1}\ns_cbranch_scc1 L_q{p}")
        for i in range(6): E(f"ds_read_b128 {v(QF + 4*i, 4)}, {v(vQr)} offset:{i*1024}")
        E.label(f"L_q{p}")
        E.cond_end()
        E.signal(f"Qr{p}")
    for p in range(8):
        if p & 1:
            E.wait('P', f"Qw{p}"); readq(p); qk(p - 1)
        else:
            if p: E.wait('P', f"Kl{p-1}"); qk(p - 1)
            E.wait('P', f"Qw{p}"); readq(p)
    MX = [vA, vB2, vSw]
    def maxpart(T0, first):
        vals = [[S(T, t, r) for T in range(T0, T0 + 8) for r in range(4)] for t in range(3)]
        for k in range(16):
            for t in range(3):
                if first and k == 0: E(f"v_max_f32 {v(MX[t])}, {v(vals[t][0])}, {v(vals[t][1])}")
                else: E(f"v_max3_f32 {v(MX[t])}, {v(vals[t][2*k])}, {v(vals[t][2*k+1])}, {v(MX[t])}")
    maxpart(0, True)
    E.wait('P', "Kl7"); qk(7)
    maxpart(8, False)
    TM = [KF, KF+1, KF+2]
    for op in ("v_permlane32_swap_b32", "v_permlane16_swap_b32"):
        for t in range(3): E(f"v_mov_b32 {v(TM[t])}, {v(MX[t])}")
        for t in range(3): E(f"{op} {v(MX[t])}, {v(TM[t])}")
        for t in range(3): E(f"v_max_f32 {v(MX[t])}, {v(MX[t])}, {v(TM[t])}")
    NM = [QF + 16, QF + 18, QF + 20]
    LA = QF; ON = QF + 12
    for t in range(3): E(f"v_mul_f32 {v(NM[t])}, {s(sC)}, {v(MX[t])}")
    for i in range(4): E(f"v_mov_b32 {v(ON+i)}, 0x3f803f80")
    E.stamp("max")
    pend = []
    for u in range(8):
        for t in range(3):
            a, b = S(2*u, t), S(2*u+1, t)
            for r in (a, a+2, b, b+2):
                E(f"v_pk_fma_f32 {v(r, 2)}, {v(r, 2)}, {s(sC, 2)}, {v(NM[t], 2)} op_sel_hi:[1,1,0] neg_lo:[0,0,1] neg_hi:[0,0,1]")
            for x in pend: E(x)
            for r in list(range(a, a+4)) + list(range(b, b+4)): E(f"v_exp_f32 {v(r)}, {v(r)}")
            E(f"v_cvt_pk_bf16_f32 {v(a)}, {v(a)}, {v(a+1)}")
            E(f"v_cvt_pk_bf16_f32 {v(a+1)}, {v(a+2)}, {v(a+3)}")
            E(f"v_cvt_pk_bf16_f32 {v(a+2)}, {v(b)}, {v(b+1)}")
            E(f"v_cvt_pk_bf16_f32 {v(a+3)}, {v(b+2)}, {v(b+3)}")
            pend = [f"{MF} {v(LA+4*t, 4)}, {v(ON, 4)}, {v(a, 4)}, {v(LA+4*t, 4) if u else 0}"]
    for x in pend: E(x)
    VA = [vK0, vK1, vK2, vK3]; VB = [KF+16, KF+17, KF+18, KF+19]
    vSt, vXw, vXr = KF+20, KF+21, KF+22
    tr_base(E, vA, vLane, vB2, vT, 1024)
    E(f"s_and_b32 {s(sT0)}, {s(sW)}, 1\ns_lshl_b32 {s(sT1)}, {s(sT0)}, 14\ns_lshl_b32 {s(sT0)}, {s(sT0)}, 6")
    E(f"v_xor_b32 {v(vA)}, {s(sT0)}, {v(vA)}\nv_add_u32 {v(vA)}, {s(sT1)}, {v(vA)}")
    for d in range(4):
        E(f"v_xor_b32 {v(VA[d])}, {d*32}, {v(vA)}\nv_add_u32 {v(VB[d])}, 0x10000, {v(VA[d])}")
    E(f"v_and_b32 {v(vA)}, 15, {v(vLane)}\nv_lshlrev_b32 {v(vA)}, 3, {v(vA)}")
    E(f"s_mul_i32 {s(sT0)}, {s(sW)}, 384\ns_add_u32 {s(sT0)}, {s(sT0)}, {ST}\nv_add_u32 {v(vB2)}, {s(sT0)}, {v(vA)}")
    E(f"s_xor_b32 {s(sT1)}, {s(sW)}, 1\ns_mul_i32 {s(sT0)}, {s(sT1)}, 384\ns_add_u32 {s(sT0)}, {s(sT0)}, {ST}\nv_add_u32 {v(vSt)}, {s(sT0)}, {v(vA)}")
    E(f"v_lshlrev_b32 {v(vA)}, 4, {v(vLane)}")
    E(f"s_mul_i32 {s(sT0)}, {s(sW)}, 6144\ns_add_u32 {s(sT0)}, {s(sT0)}, {XR}\nv_add_u32 {v(vXw)}, {s(sT0)}, {v(vA)}")
    E(f"s_mul_i32 {s(sT0)}, {s(sT1)}, 6144\ns_add_u32 {s(sT0)}, {s(sT0)}, {XR}\nv_add_u32 {v(vXr)}, {s(sT0)}, {v(vA)}")
    for t in range(3):
        E(f"v_mov_b32 {v(NM[t]+1)}, {v(LA+4*t)}")
        E(f"ds_write_b64 {v(vB2)}, {v(NM[t], 2)} offset:{t*128}")
    E.signal("St")
    E.stamp("smax")
    def OA(d, t, r=0): return S(2*d + 1, t, r)
    def PT(i): return S(9 + 2*(i // 3), i % 3)
    VF = [S(13, 0), S(13, 1), S(13, 2), S(15, 0), S(15, 1), S(15, 2), KF, KF+4]
    NVF = 7
    FS = [QF, QF + 2, QF + 4]
    def pv(q):
        half = q & 1
        ad = VB if vslot(q) >= 65536 else VA
        items = [(d, ks) for d in (2, 3, 0, 1) for ks in range(4)]
        def rd(n):
            d, ks = items[n]
            for hf in range(2):
                E(f"ds_read_b64_tr_b16 {v(VF[n % NVF] + 2*hf, 2)}, {v(ad[d])} offset:{ks*4096 + hf*2048}")
            if n == 15: E.signal(f"Kc{8+q}")
        for n in range(NVF): rd(n)
        for n, (d, ks) in enumerate(items):
            for t in range(3):
                acc = v(OA(d, t), 4)
                E(f"{MF} {acc}, {v(VF[n % NVF], 4)}, {v(S(2*(half*4+ks), t), 4)}, {acc if (half or ks) else 0}")
            if n + NVF < 16: rd(n + NVF)
    for q in range(8):
        E.wait('P', f"Kl{8+q}")
        pv(q)
        if q == 0:
            E.wait('A', "St")
            for t in range(3): E(f"ds_read_b64 {v(PT(t), 2)}, {v(vSt)} offset:{t*128}")
            for t in range(3):
                pm, pl, mx, eo = PT(t), PT(t)+1, PT(t)+2, PT(t)+3
                E(f"v_max_f32 {v(mx)}, {v(pm)}, {v(NM[t])}")
                E(f"v_sub_f32 {v(eo)}, {v(NM[t])}, {v(mx)}\nv_sub_f32 {v(pm)}, {v(pm)}, {v(mx)}")
                E(f"v_exp_f32 {v(eo)}, {v(eo)}\nv_exp_f32 {v(pm)}, {v(pm)}")
                E(f"v_mul_f32 {v(mx)}, {v(eo)}, {v(NM[t]+1)}\nv_fmac_f32 {v(mx)}, {v(pm)}, {v(pl)}")
                E(f"v_rcp_f32 {v(mx)}, {v(mx)}")
                E(f"v_mul_f32 {v(FS[t])}, {v(eo)}, {v(mx)}")
        if q & 1:
            cch = q >> 1
            if cch: E.wait('P', f"Or{cch-1}")
            for d in (2, 3):
                for t in range(3):
                    a = OA(d, t)
                    for r in (a, a+2): E(f"v_pk_mul_f32 {v(r, 2)}, {v(r, 2)}, {v(FS[t], 2)} op_sel_hi:[1,0]")
                    E(f"ds_write_b128 {v(vXw)}, {v(a, 4)} offset:{((d-2)*3+t)*1024}")
            E.signal(f"Xw{cch}"); E.wait('A', f"Xw{cch}")
            for i in range(6): E(f"ds_read_b128 {v(PT(i), 4)}, {v(vXr)} offset:{i*1024}")
            for t in range(3):
                for d in range(2):
                    a, b = OA(d, t), PT(d*3+t)
                    for r in (0, 2): E(f"v_pk_fma_f32 {v(a+r, 2)}, {v(a+r, 2)}, {v(FS[t], 2)}, {v(b+r, 2)} op_sel_hi:[1,0,1]")
            for t in range(3):
                a, b = OA(0, t), OA(1, t)
                E(f"v_cvt_pk_bf16_f32 {v(a)}, {v(a)}, {v(a+1)}\nv_cvt_pk_bf16_f32 {v(a+1)}, {v(a+2)}, {v(a+3)}")
                E(f"v_cvt_pk_bf16_f32 {v(a+2)}, {v(b)}, {v(b+1)}\nv_cvt_pk_bf16_f32 {v(a+3)}, {v(b+2)}, {v(b+3)}")
                E(f"ds_write_b128 {v(vXr)}, {v(a, 4)} offset:{t*1024}")
            E.signal(f"Ow{cch}")
    final_store(E, cfg, vLane, vA, vB2, S0)
    dump_stamps(E, cfg, vLane, vA)
    E("s_endpgm")
    return E

HEADER = open("cdna_kernels/" + NAME + ".s.ref").read().split("; Override launch")[0] if __name__ == "__main__" or True else ""

def kd(name, vg, sg):
    return f""".p2align 6
.amdhsa_kernel {name}
  .amdhsa_next_free_vgpr {vg}
  .amdhsa_next_free_sgpr {sg}
  .amdhsa_accum_offset {(vg + 3) // 4 * 4}
  .amdhsa_group_segment_fixed_size 0
  .amdhsa_kernarg_size 64
  .amdhsa_user_sgpr_count 2
  .amdhsa_user_sgpr_kernarg_segment_ptr 1
  .amdhsa_system_sgpr_workgroup_id_x 1
  .amdhsa_float_denorm_mode_32 3
.end_amdhsa_kernel
"""

def gen_reduce():
    E = Stream()
    E("s_cmp_ge_u32 s2, 336\ns_cbranch_scc1 L_rend")
    E("s_load_dwordx2 s[4:5], s[0:1], 40\ns_load_dwordx2 s[6:7], s[0:1], 56")
    E("v_lshl_add_u32 v1, s2, 8, v0")
    E(f"s_mov_b32 s16, {-(-(1 << 32) // 2688)}\nv_mul_hi_u32 v2, v1, s16")
    E(f"s_mov_b32 s17, {7*43008}\nv_mul_lo_u32 v2, v2, s17")
    E("v_lshlrev_b32 v1, 4, v1\nv_add_u32 v2, v2, v1")
    E("s_waitcnt lgkmcnt(0)")
    E(f"s_mov_b32 s8, s4\ns_and_b32 s9, s5, 0xffff\ns_mov_b32 s10, {32*43008}\ns_mov_b32 s11, 0x20000")
    E(f"s_mov_b32 s12, s6\ns_and_b32 s13, s7, 0xffff\ns_mov_b32 s14, {256*43008}\ns_mov_b32 s15, 0x20000")
    for h in range(8):
        E(f"s_mov_b32 s16, {h*43008}\nbuffer_load_dwordx4 {v(8+4*h, 4)}, v2, s[12:15], s16 offen")
    for h in range(8):
        for i in range(4):
            r = 8 + 4*h + i
            if h == 0: E(f"v_lshlrev_b32 {v(40+2*i)}, 16, {v(r)}\nv_and_b32 {v(41+2*i)}, 0xffff0000, {v(r)}")
            else:
                E(f"v_lshlrev_b32 v3, 16, {v(r)}\nv_and_b32 v4, 0xffff0000, {v(r)}")
                E(f"v_add_f32 {v(40+2*i)}, {v(40+2*i)}, v3\nv_add_f32 {v(41+2*i)}, {v(41+2*i)}, v4")
    for i in range(4): E(f"v_cvt_pk_bf16_f32 {v(48+i)}, {v(40+2*i)}, {v(41+2*i)}")
    E("buffer_store_dwordx4 v[48:51], v1, s[8:11], 0 offen")
    E.label("L_rend"); E("s_endpgm")
    return E

def gen(cfg):
    ids = {}
    for _ in range(2):
        P = gen_proj(cfg, ids); A = gen_attn(cfg, ids)
    check_deadlock(P, A, ids)
    H = Stream()
    H("s_cmp_ge_u32 s2, 256\ns_cbranch_scc0 L_go")
    H.label("L_end"); H("s_endpgm"); H.label("L_go")
    H("s_load_dwordx16 s[4:19], s[0:1], 0")
    H(f"v_lshrrev_b32 v1, 6, v0\ns_lshr_b32 {s(sB)}, s2, 3\ns_and_b32 {s(sH)}, s2, 7\nv_readfirstlane_b32 {s(sW)}, v1")
    H(f"s_mov_b32 {s(sSpin)}, 0x100000")
    if cfg.stamps: H("v_mov_b32 v11, 0")
    H(f"s_lshl_b32 {s(sT0)}, s2, 18")
    H(f"s_mul_i32 {s(sT1)}, {s(sB)}, 43008\ns_lshl_b32 {s(sT2)}, {s(sH)}, 10\ns_mul_i32 {s(sT3)}, {s(sH)}, 458752")
    for d in (sX, sK, sV, sWq, sWo, sWs): H(f"s_mov_b32 {s(d+3)}, 0x20000")
    H(f"s_mov_b32 {s(sX+2)}, 43008\ns_mov_b32 {s(sK+2)}, 262144\ns_mov_b32 {s(sV+2)}, 262144")
    H(f"s_sub_u32 {s(sWq+2)}, 3670016, {s(sT2)}\ns_mov_b32 {s(sWo+2)}, 458752\ns_mov_b32 {s(sWs+2)}, 43008")
    H(f"s_mul_i32 {s(sOff)}, s2, 43008")
    H("s_waitcnt lgkmcnt(0)")
    for d, src, off in ((sK, 6, sT0), (sX, 4, sT1), (sWq, 10, sT2), (sV, 8, sT0), (sWo, 12, sT3), (sWs, 18, sOff)):
        H(f"s_add_u32 {s(d)}, {s(src)}, {s(off)}\ns_addc_u32 {s(d+1)}, {s(src+1)}, 0\ns_and_b32 {s(d+1)}, {s(d+1)}, 0xffff")
    H(f"s_cmp_lt_u32 {s(sW)}, 4\ns_cbranch_scc1 L_attn")
    out = [HEADER.rstrip()]
    out.append(f"; @launch kernel={NAME}_kernel grid=(256,1,1) block=(512,1,1) lds=163840")
    out.append(f"; @launch kernel=gqa_reduce_kernel grid=(336,1,1) block=(256,1,1) lds=0")
    out.append('.amdgcn_target "amdgcn-amd-amdhsa--gfx950"\n.text')
    out.append(f".globl {NAME}_kernel\n.p2align 8\n.type {NAME}_kernel,@function\n{NAME}_kernel:")
    out += [H.text(), P.text(), ".p2align 6\nL_attn:", A.text()]
    out.append(".globl gqa_reduce_kernel\n.p2align 8\n.type gqa_reduce_kernel,@function\ngqa_reduce_kernel:")
    out.append(gen_reduce().text())
    out.append('.section .rodata,"a"')
    out.append(kd(NAME + "_kernel", 256, 96)); out.append(kd("gqa_reduce_kernel", 56, 32))
    return "\n".join(out), P.stn, A.stn

if __name__ == "__main__":
    kw = eval("dict(" + (sys.argv[2] if len(sys.argv) > 2 else "") + ")")
    txt, _, _ = gen(Cfg(**kw))
    open(sys.argv[1], "w").write(txt)
```

```python
import sys, math
from asmlib import Stream, v, s
NAME = "standalone__gqa_block_cached__near_ridge"
STAMP_OFF = 0x8000000

SLOT = [0, 32768, 65536]
WB = 98304
QB = 155648
FL = 161792
ST = 161856
XS = 32768
XR = SLOT[1]
TB = SLOT[2]
TP = 912
def kslot(p): return SLOT[p % 3]
def vslot(p): return SLOT[2] if p % 2 == 0 else SLOT[0]

sX, sK, sV, sWq, sWo, sWs, sOut, sDbg = 20, 24, 28, 32, 36, 40, 44, 48
sW, sJ, sOff, sB, sH, sSpin, sC, sT0, sT1, sSt = 52, 53, 54, 55, 56, 57, 58, 60, 61, 62
sT2, sT3 = 64, 65
sHk = 3
IB_OFF = 0x1000000
MF = "v_mfma_f32_16x16x32_bf16"

class Cfg:
    kvpol = "nt"; wpol = ""; xpol = ""; stamps = False; fused = 1
    pre = 4
    b2q = 3
    b1v = 12
    g0 = 4
    kthr = 4
    klpos = 11
    owpos = 5
    fine = None
    sleep = 0
    prio = 1; stpol = 'sc1'; outpol = ''
    pf_w = True; pf_code = False
    def __init__(self, **k):
        for a, b in k.items():
            assert hasattr(self, a), a
            setattr(self, a, b)

class Role(Stream):
    def __init__(self, cls, ids, cfg, vFlag, vPoll, vT, vStamp):
        super().__init__()
        self.cls, self.ids, self.cfg = cls, ids, cfg
        self.vFlag, self.vPoll, self.vT, self.vStamp = vFlag, vPoll, vT, vStamp
        self.n = 0; self.ev = []; self.nl = 0; self.stn = []; self.ast = []
    def signal(self, name):
        self.n += 1
        self.ids[(self.cls, name)] = self.n
        self.ev.append(('sig', name))
        if self.cfg.fine and "sig" + name in self.cfg.fine: self.astamp("sig" + name)
        self(f"v_mov_b32 {v(self.vT)}, {self.n}")
        self(f"ds_write_b32 {v(self.vFlag)}, {v(self.vT)}")
    def wait(self, cls, name, stamp=None):
        idn = self.ids.get((cls, name), 0)
        self.ev.append(('wait', cls, name))
        self.nl += 1
        lab = f"Lw{self.cls}{self.nl}"
        self.label(lab)
        self(f"ds_read_b32 {v(self.vT)}, {v(self.vPoll)} offset:{0 if cls == 'P' else 16}")
        self(f"s_sub_u32 {s(sSpin)}, {s(sSpin)}, 1")
        self("s_cbranch_scc1 L_end")
        self("s_waitcnt lgkmcnt(0)")
        self(f"v_cmp_gt_u32 vcc, {idn}, {v(self.vT)}")
        self(f"s_cbranch_vccnz {lab}")
        if self.cfg.fine:
            if f"{cls}:{name}" in self.cfg.fine: self.astamp(f"{cls}:{name}"); self.flush_ast()
        else: self.stamp(stamp or f"{cls}:{name}")
    def wait2(self, nameP, nameA, vT2):
        self.ev.append(('wait', 'P', nameP)); self.ev.append(('wait', 'A', nameA))
        self.nl += 1
        lab = f"Lw{self.cls}{self.nl}"
        self.label(lab)
        self(f"ds_read_b32 {v(self.vT)}, {v(self.vPoll)}")
        self(f"ds_read_b32 {v(vT2)}, {v(self.vPoll)} offset:16")
        self(f"s_sub_u32 {s(sSpin)}, {s(sSpin)}, 1")
        self("s_cbranch_scc1 L_end")
        self("s_waitcnt lgkmcnt(0)")
        self(f"v_cmp_gt_u32 vcc, {self.ids.get(('P', nameP), 0)}, {v(self.vT)}")
        self(f"s_cbranch_vccnz {lab}")
        self(f"v_cmp_gt_u32 vcc, {self.ids.get(('A', nameA), 0)}, {v(vT2)}")
        self(f"s_cbranch_vccnz {lab}")
        if self.cfg.fine:
            if f"P:{nameP}" in self.cfg.fine: self.astamp(f"P:{nameP}"); self.flush_ast()
        else: self.stamp(f"P:{nameP}")
    def barrier(self, name):
        self.ev.append(('bar', name))
        self("s_barrier")
        if not self.cfg.fine: self.stamp("B:" + name)
        elif "B:" + name in self.cfg.fine: self.astamp("B:" + name); self.flush_ast()
    def stamp(self, name):
        if not self.cfg.stamps or len(self.stn) >= 61 or (self.cfg.stamps == 'min' and name not in ('start', 'end', 'B:T', 'stored', 'flags')): return
        self("s_waitcnt lgkmcnt(0)")
        self(f"s_memtime {s(sSt, 2)}")
        self("s_waitcnt lgkmcnt(0)")
        self(f"v_writelane_b32 {v(self.vStamp)}, {s(sSt)}, {len(self.stn)}")
        self.stn.append(name)
    def dma(self, voff, srd, soff, lds, pol, tag, sbase=sJ):
        self(f"s_add_u32 m0, {s(sbase)}, {lds}")
        self(f"s_mov_b32 {s(sOff)}, {soff}")
        self(f"buffer_load_dwordx4 {v(voff)}, {s(srd, 4)}, {s(sOff)} offen {pol} lds", tag)
        if self.cfg.fine and tag in self.cfg.fine: self.astamp(tag)
    def astamp(self, name):
        if len(self.ast) < 18:
            self(f"s_memtime {s(66 + 2*len(self.ast), 2)}"); self.ast.append(name)
    def flush_ast(self):
        if not self.ast: return
        self("s_waitcnt lgkmcnt(0)")
        for i, n in enumerate(self.ast):
            if len(self.stn) < 60:
                self(f"v_writelane_b32 {v(self.vStamp)}, {s(66 + 2*i)}, {len(self.stn)}"); self.stn.append(n)
        self.ast = []

def check_deadlock(P, A, ids):
    pos = {'P': 0, 'A': 0}; cnt = {'P': 0, 'A': 0}; ev = {'P': P.ev, 'A': A.ev}
    while True:
        prog = False
        for c in 'PA':
            while pos[c] < len(ev[c]):
                e = ev[c][pos[c]]
                if e[0] == 'sig': cnt[c] += 1
                elif e[0] == 'bar':
                    o = 'A' if c == 'P' else 'P'
                    if pos[o] < len(ev[o]) and ev[o][pos[o]] == e: pos[o] += 1
                    else: break
                else:
                    assert (e[1], e[2]) in ids, e
                    if cnt[e[1]] < ids[(e[1], e[2])]: break
                pos[c] += 1; prog = True
        if all(pos[c] == len(ev[c]) for c in 'PA'): return
        assert prog, ("deadlock", ev['P'][pos['P']:pos['P']+1], ev['A'][pos['A']:pos['A']+1])

def common_lane(E, vLane, vSw):
    E(f"v_and_b32 {v(vLane)}, 63, v0")
    E(f"v_lshrrev_b32 {v(vSw)}, 3, {v(vLane)}")
    E(f"v_and_b32 {v(vSw)}, 6, {v(vSw)}")
    E(f"v_xor_b32 {v(vSw)}, {v(vSw)}, {v(vLane)}")
    E(f"v_and_b32 {v(vSw)}, 7, {v(vSw)}")
    E(f"v_lshlrev_b32 {v(vSw)}, 4, {v(vSw)}")

def tr_base(E, dst, vLane, t1, t2, gmul):
    E(f"v_lshrrev_b32 {v(t1)}, 5, {v(vLane)}")
    E(f"v_mul_u32_u24 {v(dst)}, {gmul}, {v(t1)}")
    E(f"v_bfe_u32 {v(t1)}, {v(vLane)}, 2, 3")
    E(f"v_lshl_add_u32 {v(dst)}, {v(t1)}, 7, {v(dst)}")
    E(f"v_bfe_u32 {v(t1)}, {v(vLane)}, 3, 2")
    E(f"v_lshl_add_u32 {v(dst)}, {v(t1)}, 5, {v(dst)}")
    E(f"v_and_b32 {v(t1)}, 3, {v(vLane)}")
    E(f"v_lshl_add_u32 {v(dst)}, {v(t1)}, 3, {v(dst)}")

def b128_base(E, dst, vLane, t1, t2):
    E(f"v_and_b32 {v(t1)}, 15, {v(vLane)}")
    E(f"v_lshlrev_b32 {v(dst)}, 7, {v(t1)}")
    E(f"v_and_b32 {v(t1)}, 6, {v(vLane)}")
    E(f"v_lshrrev_b32 {v(t2)}, 4, {v(vLane)}")
    E(f"v_xor_b32 {v(t1)}, {v(t1)}, {v(t2)}")
    E(f"v_lshl_add_u32 {v(dst)}, {v(t1)}, 4, {v(dst)}")

def final_store(E, cfg, vLane, vA, vG, tmp):
    c = E.cls
    pol = cfg.stpol if cfg.fused else ""
    E(f"s_mul_i32 {s(sT0)}, {s(sW)}, {6*TP}")
    E(f"s_add_u32 {s(sT0)}, {s(sT0)}, {TB}")
    E(f"v_lshlrev_b32 {v(vG)}, 4, {v(vLane)}")
    E(f"v_add_u32 {v(vA)}, {s(sT0)}, {v(vG)}")
    E(f"s_mul_i32 {s(sT0)}, {s(sW)}, {6*896}\ns_mul_i32 {s(sT1)}, {s(sHk)}, 43008\ns_add_u32 {s(sT0)}, {s(sT0)}, {s(sT1)}")
    E(f"s_add_u32 {s(sT1)}, {s(sT0)}, {4*896}")
    own, acc, vR = tmp + 24, tmp + 60, tmp + 56
    if cfg.fused:
        E(f"s_mul_i32 {s(sT2)}, {s(sHk)}, 6\ns_add_u32 {s(sT2)}, {s(sT2)}, {s(sW)}")
        E(f"s_mul_i32 {s(sT3)}, {s(sT2)}, {TP}\ns_add_u32 {s(sT3)}, {s(sT3)}, {TB}\nv_add_u32 {v(vR)}, {s(sT3)}, {v(vG)}")
        E(f"s_mul_i32 {s(sT2)}, {s(sT2)}, 896\nv_add_u32 {v(vR+1)}, {s(sT2)}, {v(vG)}")
        E(f"v_mov_b32 {v(vR+2)}, 1")
        E(f"s_mul_i32 {s(sT3)}, {s(sB)}, 43008")
        E(f"s_add_u32 {s(sOut)}, s14, {s(sT3)}\ns_addc_u32 {s(sOut+1)}, s15, 0\ns_and_b32 {s(sOut+1)}, {s(sOut+1)}, 0xffff")
        E(f"s_mov_b32 {s(sOut+2)}, 43008\ns_mov_b32 {s(sOut+3)}, 0x20000")
    E.barrier('T')
    E("s_mov_b32 exec_hi, 0x00ffffff")
    if cfg.fused: E(f"s_cmp_eq_u32 {s(sW)}, {s(sHk)}\ns_cbranch_scc1 L_nost{c}")
    for r in range(6): E(f"ds_read_b128 {v(tmp+4*r, 4)}, {v(vA)} offset:{r*TP}")
    for r in range(6):
        E(f"buffer_store_dwordx4 {v(tmp+4*r, 4)}, {v(vG)}, {s(sWs, 4)}, {s(sT0 if r < 4 else sT1)} offen offset:{(r % 4)*896} {pol}")
    if not cfg.fused:
        E("s_mov_b32 exec_hi, -1")
        return
    E.label(f"L_nost{c}")
    E(f"ds_read_b128 {v(own, 4)}, {v(vR)}")
    E("s_waitcnt vmcnt(0)")
    E.stamp("stored")
    if cfg.fused == 1:
        E.barrier('S')
        if c == 'P':
            E(f"s_cmp_lg_u32 {s(sW)}, 7\ns_cbranch_scc1 L_nopoll")
            E(f"v_mov_b32 {v(vA)}, s2\ns_and_b32 {s(sT0)}, s2, 0xf8\nv_mov_b32 {v(vG)}, {s(sT0)}\ns_mov_b64 exec, 1")
            E(f"buffer_store_byte {v(vR+2)}, {v(vA)}, {s(sDbg, 4)}, 0 offen sc1")
            E.label("L_poll")
            E(f"buffer_load_dwordx2 {v(tmp, 2)}, {v(vG)}, {s(sDbg, 4)}, 0 offen sc1")
            E(f"s_sub_u32 {s(sSpin)}, {s(sSpin)}, 1\ns_cbranch_scc1 L_end")
            E(f"s_waitcnt vmcnt(0)\nv_and_b32 {v(tmp)}, {v(tmp)}, {v(tmp+1)}\nv_cmp_ne_u32 vcc, 0x01010101, {v(tmp)}\ns_cbranch_vccnz L_poll")
            E.label("L_nopoll")
        E.barrier('R')
        if c == 'P': E(f"s_cmp_ge_u32 {s(sW)}, 6\ns_cbranch_scc1 L_fin{c}")
    else:
        E(f"s_lshl_b32 {s(sT0)}, {s(sW)}, 8\ns_lshl_b32 {s(sT1)}, {s(sHk)}, 2\ns_add_u32 {s(sT0)}, {s(sT0)}, {s(sT1)}")
        E(f"v_mov_b32 {v(vA)}, {s(sT0)}\ns_lshl_b32 {s(sT1)}, {s(sHk)}, 8")
        E(f"v_and_b32 {v(vG)}, 7, {v(vLane)}\nv_lshl_add_u32 {v(vG)}, {v(vG)}, 2, {s(sT1)}")
        E(f"s_mov_b64 exec, 1\nbuffer_store_dword {v(vR+2)}, {v(vA)}, {s(sDbg, 4)}, 0 offen sc1")
        if c == 'P': E(f"s_cmp_ge_u32 {s(sW)}, 6\ns_cbranch_scc1 L_fin{c}")
        E("s_mov_b64 exec, 0xff")
        E.label(f"L_poll{c}")
        E(f"buffer_load_dword {v(tmp)}, {v(vG)}, {s(sDbg, 4)}, 0 offen sc1")
        E(f"s_sub_u32 {s(sSpin)}, {s(sSpin)}, 1\ns_cbranch_scc1 L_end")
        E(f"s_waitcnt vmcnt(0)\nv_cmp_ne_u32 vcc, 1, {v(tmp)}\ns_cbranch_vccnz L_poll{c}")
        E("s_mov_b32 exec_lo, -1\ns_mov_b32 exec_hi, 0x00ffffff")
    E.stamp("flags")
    for k in range(1, 8):
        E(f"s_add_u32 {s(sT0)}, {s(sHk)}, {k}\ns_and_b32 {s(sT0)}, {s(sT0)}, 7\ns_mul_i32 {s(sT0)}, {s(sT0)}, 43008")
        E(f"buffer_load_dwordx4 {v(own + 4*k, 4)}, {v(vR+1)}, {s(sWs, 4)}, {s(sT0)} offen sc1")
    for k in range(8):
        for i in range(4):
            r = own + 4*k + i
            if k == 0: E(f"v_lshlrev_b32 {v(acc+2*i)}, 16, {v(r)}\nv_and_b32 {v(acc+2*i+1)}, 0xffff0000, {v(r)}")
            else:
                E(f"v_lshlrev_b32 {v(tmp)}, 16, {v(r)}\nv_and_b32 {v(tmp+1)}, 0xffff0000, {v(r)}")
                E(f"v_pk_add_f32 {v(acc+2*i, 2)}, {v(acc+2*i, 2)}, {v(tmp, 2)}")
    for i in range(4): E(f"v_cvt_pk_bf16_f32 {v(tmp+4+i)}, {v(acc+2*i)}, {v(acc+2*i+1)}")
    E(f"buffer_store_dwordx4 {v(tmp+4, 4)}, {v(vR+1)}, {s(sOut, 4)}, 0 offen {cfg.outpol}")
    E.label(f"L_fin{c}")
    E("s_mov_b64 exec, -1")

def dump_stamps(E, cfg, vLane, t):
    if not cfg.stamps: return
    E.wait_vm(0, force=True)
    E.stamp("end")
    E(f"s_memrealtime {s(sSt, 2)}\ns_waitcnt lgkmcnt(0)\nv_writelane_b32 {v(E.vStamp)}, {s(sSt)}, 63")
    E(f"s_lshl_b32 {s(sT0)}, s2, 3\ns_add_u32 {s(sT0)}, {s(sT0)}, {s(sW)}\ns_lshl_b32 {s(sT0)}, {s(sT0)}, 8")
    E(f"s_add_u32 {s(sOut)}, s18, {STAMP_OFF}\ns_addc_u32 {s(sOut+1)}, s19, 0\ns_and_b32 {s(sOut+1)}, {s(sOut+1)}, 0xffff")
    E(f"s_mov_b32 {s(sOut+2)}, {256*8*256}\ns_mov_b32 {s(sOut+3)}, 0x20000")
    E(f"v_lshlrev_b32 {v(t)}, 2, {v(vLane)}")
    E(f"buffer_store_dword {v(E.vStamp)}, {v(t)}, {s(sOut, 4)}, {s(sT0)} offen")

def gen_proj(cfg, ids):
    vLane, vSw, vKV, vWq, vWo, vWqRd, vQwr, vFlag, vPoll, vT, vStamp, vA, vB2 = 1, 2, 3, 4, 5, 6, 7, 8, 9, 10, 11, 12, 13
    XF = 16; WA = 184; QA = 240
    OUT = 16; OF = 100; WBs = 128; WR = 240
    vOr, vTw = 247, 248
    E = Role('P', ids, cfg, vFlag, vPoll, vT, vStamp)
    if cfg.prio: E(f"s_setprio {cfg.prio}")
    E(f"s_sub_u32 {s(sT0)}, {s(sW)}, 4")
    E(f"s_lshl_b32 {s(sJ)}, {s(sT0)}, 10")
    common_lane(E, vLane, vSw)
    E(f"v_lshrrev_b32 {v(vA)}, 3, {v(vLane)}")
    E(f"v_lshl_add_u32 {v(vKV)}, {v(vA)}, 9, {v(vSw)}")
    E(f"s_lshl_b32 {s(sT1)}, {s(sT0)}, 12")
    E(f"v_add_u32 {v(vKV)}, {s(sT1)}, {v(vKV)}")
    def issueK(p, lo=0, hi=8):
        for i in range(lo, hi):
            if i == 0 and p == 9: E.wait_vm(cfg.kthr)
            if p < 8: E.dma(vKV, sK, ((p & 1) * 256 + 32 * i) * 512 + (p >> 1) * 128, kslot(p) + 4096 * i, cfg.kvpol, f"K{p}")
            else:
                q = p - 8
                E.dma(vKV, sV, ((q & 1) * 256 + 32 * i) * 512 + (q >> 1) * 128, vslot(q) + 4096 * i, cfg.kvpol, f"K{p}")
    def issueW(p, lo=0, hi=14):
        for i in range(lo, hi):
            if p < 8: E.dma(vWq, sWq, 32 * i * 8192 + (p & 1) * 512 + (p >> 1) * 128, WB + 4096 * i, cfg.wpol, f"W{p}")
            else:
                q = p - 8
                E.dma(vWo, sWo, ((q & 1) * 256 + 64 * (q >> 1) + 32 * (i // 7)) * 896 + (i % 7) * 128, WB + 4096 * i, cfg.wpol, f"W{p}")
    issueK(0)
    E(f"v_and_b32 {v(vB2)}, 4, {v(vA)}")
    E(f"v_add_u32 {v(vB2)}, {v(vB2)}, {v(vA)}")
    E(f"s_lshr_b32 {s(sT1)}, {s(sT0)}, 1\ns_lshl_b32 {s(sT1)}, {s(sT1)}, 4")
    E(f"s_and_b32 {s(sT2)}, {s(sT0)}, 1\ns_lshl_b32 {s(sT2)}, {s(sT2)}, 2\ns_add_u32 {s(sT1)}, {s(sT1)}, {s(sT2)}")
    E(f"v_add_u32 {v(vB2)}, {s(sT1)}, {v(vB2)}")
    E(f"v_lshl_add_u32 {v(vWq)}, {v(vB2)}, 13, {v(vSw)}")
    E(f"s_lshl_b32 {s(sT1)}, {s(sT0)}, 2\ns_add_u32 {s(sT1)}, {s(sT1)}, {FL}")
    E(f"v_mov_b32 {v(vFlag)}, {s(sT1)}\nv_mov_b32 {v(vT)}, 0\nds_write_b32 {v(vFlag)}, {v(vT)}")
    E(f"v_and_b32 {v(vPoll)}, 3, {v(vLane)}\nv_lshlrev_b32 {v(vPoll)}, 2, {v(vPoll)}\nv_add_u32 {v(vPoll)}, {FL}, {v(vPoll)}")
    E("s_waitcnt lgkmcnt(0)\ns_barrier")
    E.stamp("start")
    issueW(0)
    E(f"s_lshl_b32 {s(sT1)}, {s(sT0)}, 3\nv_add_u32 {v(vB2)}, {s(sT1)}, {v(vA)}")
    E(f"v_mul_u32_u24 {v(vWo)}, 896, {v(vB2)}\nv_add_u32 {v(vWo)}, {v(vWo)}, {v(vSw)}")
    tr_base(E, vWqRd, vLane, vA, vB2, 2048)
    E(f"s_lshl_b32 {s(sT1)}, {s(sT0)}, 5\nv_xor_b32 {v(vWqRd)}, {s(sT1)}, {v(vWqRd)}\nv_add_u32 {v(vWqRd)}, {WB}, {v(vWqRd)}")
    E(f"v_and_b32 {v(vA)}, 15, {v(vLane)}\nv_lshlrev_b32 {v(vQwr)}, 4, {v(vA)}")
    E(f"v_lshrrev_b32 {v(vA)}, 5, {v(vLane)}\nv_lshl_add_u32 {v(vQwr)}, {v(vA)}, 8, {v(vQwr)}")
    E(f"v_bfe_u32 {v(vA)}, {v(vLane)}, 4, 1\nv_lshl_add_u32 {v(vQwr)}, {v(vA)}, 3, {v(vQwr)}")
    E(f"s_lshr_b32 {s(sT1)}, {s(sT0)}, 1\ns_mul_i32 {s(sT1)}, {s(sT1)}, 3072")
    E(f"s_and_b32 {s(sT2)}, {s(sT0)}, 1\ns_lshl_b32 {s(sT2)}, {s(sT2)}, 9\ns_add_u32 {s(sT1)}, {s(sT1)}, {s(sT2)}\ns_add_u32 {s(sT1)}, {s(sT1)}, {QB}")
    E(f"v_add_u32 {v(vQwr)}, {s(sT1)}, {v(vQwr)}")
    b128_base(E, vA, vLane, vB2, vT)
    E(f"v_add_u32 {v(vA)}, {XS}, {v(vA)}\nv_xor_b32 {v(vB2)}, 64, {v(vA)}")
    E.barrier('x')
    for ks in range(14):
        for t in range(3):
            E(f"ds_read_b128 {v(XF + (ks*3+t)*4, 4)}, {v(vB2 if ks & 1 else vA)} offset:{(ks >> 1)*6144 + t*2048}")
    def w_landed(p):
        E.wait_tag(f"W{p}")
        E.signal(f"Wl{p}"); E.wait('P', f"Wl{p}")
    def interleave(dmas, groups, pre, hooks):
        nd = 0; gi = 0
        def one():
            nonlocal nd
            dmas[nd](); nd += 1
            if nd in hooks: hooks[nd]()
        if 0 in hooks: hooks[0]()
        while nd < min(pre, len(dmas)): one()
        rest = len(dmas) - nd
        for k, g in enumerate(groups):
            g()
            want = pre + (k + 1) * rest // len(groups) if rest else 0
            while nd < min(want, len(dmas)): one()
        while nd < len(dmas): one()
    def qwrite():
        for t in range(3):
            E(f"v_cvt_pk_bf16_f32 {v(QA+4*t)}, {v(QA+4*t)}, {v(QA+4*t+1)}")
            E(f"v_cvt_pk_bf16_f32 {v(QA+4*t+1)}, {v(QA+4*t+2)}, {v(QA+4*t+3)}")
            E(f"ds_write_b64 {v(vQwr)}, {v(QA+4*t, 2)} offset:{t*1024}")
    for p in range(8):
        E.wait_tag(f"W{p}")
        if p: E.wait_lgkm(0)
        E.barrier(f"1_{p}")
        for i in range(14):
            for hf in range(2):
                E(f"ds_read_b64_tr_b16 {v(WA + 4*i + 2*hf, 2)}, {v(vWqRd)} offset:{i*4096 + hf*1024}")
        def grp(i):
            for t in range(3):
                E(f"{MF} {v(QA+4*t, 4)}, {v(WA+4*i, 4)}, {v(XF+(i*3+t)*4, 4)}, {v(QA+4*t, 4) if i else 0}")
        for i in range(cfg.g0): grp(i)
        E.wait_lgkm(0)
        E.barrier(f"2_{p}")
        groups = [lambda i=i: grp(i) for i in range(cfg.g0, 14)]
        if p < 7:
            interleave([lambda i=i: issueW(p + 1, i, i + 1) for i in range(14)], groups, cfg.pre, {})
            E.barrier(f"4_{p}")
            issueK(p + 1)
            qwrite()
        else:
            for g in groups: g()
            E.barrier("3_7")
            issueK(8, 0, 4)
            qwrite(); E.wait_lgkm(0)
            E.barrier("4_7")
            issueK(8, 4, 8)
    tr_base(E, vA, vLane, vB2, vT, 1024)
    E(f"s_lshr_b32 {s(sT0)}, {s(sJ)}, 10\ns_mul_i32 {s(sT0)}, {s(sT0)}, 7")
    for i in range(7):
        E(f"s_add_u32 {s(sT1)}, {s(sT0)}, {i}\ns_and_b32 {s(sT2)}, {s(sT1)}, 3\ns_lshl_b32 {s(sT2)}, {s(sT2)}, 5")
        E(f"s_lshr_b32 {s(sT1)}, {s(sT1)}, 2\ns_lshl_b32 {s(sT1)}, {s(sT1)}, 12\ns_add_u32 {s(sT1)}, {s(sT1)}, {WB}")
        E(f"v_xor_b32 {v(WR+i)}, {s(sT2)}, {v(vA)}\nv_add_u32 {v(WR+i)}, {s(sT1)}, {v(WR+i)}")
    E(f"v_lshlrev_b32 {v(vOr)}, 4, {v(vLane)}\nv_add_u32 {v(vOr)}, {XR}, {v(vOr)}")
    E(f"v_and_b32 {v(vA)}, 15, {v(vLane)}\nv_mul_u32_u24 {v(vTw)}, {TP}, {v(vA)}")
    E(f"v_lshrrev_b32 {v(vA)}, 4, {v(vLane)}\nv_lshl_add_u32 {v(vTw)}, {v(vA)}, 3, {v(vTw)}")
    E(f"s_lshl_b32 {s(sT0)}, {s(sT0)}, 5\ns_add_u32 {s(sT0)}, {s(sT0)}, {TB}\nv_add_u32 {v(vTw)}, {s(sT0)}, {v(vTw)}")
    E.wait_tag("K7")
    E.barrier("5_7")
    issueW(8)
    issueK(9)
    def wset(q): return WA if q % 2 == 0 else WBs
    def read_of(q, dst):
        h = q & 1
        for ks in range(2):
            for t in range(3):
                E(f"ds_read_b128 {v(dst + (ks*3+t)*4, 4)}, {v(vOr)} offset:{(h*2 + (ks ^ 1))*6144 + t*1024}")
    def ogrp(q, of, i, ks):
        for t in range(3):
            acc = v(OUT + (i*3+t)*4, 4)
            E(f"{MF} {acc}, {v(wset(q) + (ks*7+i)*4, 4)}, {v(of + (ks*3+t)*4, 4)}, {acc if (q or ks) else 0}")
    def oproj(q, of, last=False, hook=None):
        for i in range(7):
            for ks in range(2): ogrp(q, of, i, ks)
            if hook: hook(i)
    for q in range(8):
        p = 8 + q
        if q == 0: w_landed(p)
        else:
            E.wait_tag(f"W{p}"); E.barrier(f"1_{p}")
        if q and not q & 1: read_of(q - 1, OF)
        for i in range(7):
            for ks in range(2):
                for hf in range(2):
                    E(f"ds_read_b64_tr_b16 {v(wset(q) + (ks*7+i)*4 + 2*hf, 2)}, {v(WR+i)} offset:{ks*28672 + hf*2048}")
        groups = [lambda i=i, ks=ks: ogrp(q - 1, OF, i, ks) for i in range(7) for ks in range(2)] if q else []
        if q == 0:
            E.signal(f"Wr{p}"); E.wait('P', f"Wr{p}")
        else:
            E.wait_lgkm(0); E.barrier(f"2_{p}")
        if q == 7:
            E.barrier(f"3_{p}"); read_of(6, OF)
            oproj(6, OF, hook=lambda i: read_of(7, WA) if i == 5 else None)
            break
        dw = [lambda i=i: issueW(p + 1, i, i + 1) for i in range(14)]
        def geto():
            E.barrier(f"3_{p}"); read_of(q - 1, OF)
        interleave(dw, groups, cfg.pre + (1 if q & 1 else 0), {cfg.pre: geto} if q & 1 else {})
        E.wait_tag(f"K{p+1}")
        E.barrier(f"4_{p}")
        if q < 6: issueK(p + 2)
    def fin(i):
        if i == 0: return
        emit_T(i - 1)
    def emit_T(i):
        for t in range(3):
            a = OUT + (i*3+t)*4
            E(f"v_cvt_pk_bf16_f32 {v(a)}, {v(a)}, {v(a+1)}")
            E(f"v_cvt_pk_bf16_f32 {v(a+1)}, {v(a+2)}, {v(a+3)}")
            E(f"ds_write_b64 {v(vTw)}, {v(a, 2)} offset:{t*16*TP + i*32}")
    oproj(7, WA, hook=fin)
    emit_T(6)
    E.wait_lgkm(0)
    final_store(E, cfg, vLane, vA, vB2, WBs)
    dump_stamps(E, cfg, vLane, vA)
    E("s_endpgm")
    return E

def gen_attn(cfg, ids):
    vLane, vSw, vK0, vK1, vK2, vK3, vQr, vFlag, vPoll, vT, vStamp, vA, vB2 = 1, 2, 3, 4, 5, 6, 7, 8, 9, 10, 11, 12, 13
    vM = 14
    S0 = 16; QF = 208; KF = 232; NKF = 6
    def S(T, t, r=0): return S0 + (T*3 + t)*4 + r
    E = Role('A', ids, cfg, vFlag, vPoll, vT, vStamp)
    common_lane(E, vLane, vSw)
    E(f"v_lshrrev_b32 {v(vA)}, 3, {v(vLane)}")
    if cfg.pf_w:
        E(f"s_and_b32 {s(sT0)}, {s(sW)}, 1\ns_lshl_b32 {s(sT1)}, {s(sB)}, 1\ns_add_u32 {s(sT0)}, {s(sT0)}, {s(sT1)}\ns_mul_i32 {s(sT0)}, {s(sT0)}, 7")
        E(f"v_and_b32 {v(vB2)}, 7, {v(vLane)}\nv_lshlrev_b32 {v(vB2)}, 7, {v(vB2)}\nv_lshl_add_u32 {v(vB2)}, {v(vA)}, 13, {v(vB2)}")
        E(f"v_lshlrev_b32 {v(vT)}, 7, {v(vLane)}")
        E(f"s_lshl_b32 {s(sT1)}, {s(sT0)}, 13\ns_lshl_b32 {s(sT2)}, {s(sT0)}, 10")
        E("s_mov_b32 exec_hi, 0x00ffffff")
        E(f"s_cmp_ge_u32 {s(sW)}, 2\ns_cbranch_scc1 L_pfo")
        E.raw(f"buffer_load_dword {v(vM)}, {v(vB2)}, {s(sWq, 4)}, {s(sT1)} offen\ns_branch L_pfd\nL_pfo:")
        E(f"buffer_load_dword {v(vM)}, {v(vT)}, {s(sWo, 4)}, {s(sT2)} offen")
        E.label("L_pfd")
        E("s_mov_b32 exec_hi, -1")
    E(f"v_mul_u32_u24 {v(vK0)}, 896, {v(vA)}\nv_add_u32 {v(vK0)}, {v(vK0)}, {v(vSw)}")
    E(f"s_mul_i32 {s(sT0)}, {s(sW)}, {8*896}\nv_add_u32 {v(vK1)}, {s(sT0)}, {v(vK0)}")
    E(f"s_lshl_b32 {s(sJ)}, {s(sW)}, 10")
    for jl in range(7): E.dma(vK1, sX, jl * 128, XS + jl * 6144, cfg.xpol, "x")
    E(f"s_lshr_b32 {s(sT0)}, {s(sW)}, 1\ns_add_u32 {s(sT0)}, {s(sT0)}, 4\ns_and_b32 {s(sT1)}, {s(sW)}, 1")
    E(f"s_lshl_b32 {s(sJ)}, {s(sT0)}, 10\ns_mul_i32 {s(sT2)}, {s(sT1)}, {3*6144}\ns_add_u32 {s(sJ)}, {s(sJ)}, {s(sT2)}")
    E(f"s_mul_i32 {s(sT0)}, {s(sT0)}, {8*896}\ns_mul_i32 {s(sT1)}, {s(sT1)}, 384\ns_add_u32 {s(sT0)}, {s(sT0)}, {s(sT1)}")
    E(f"v_add_u32 {v(vK1)}, {s(sT0)}, {v(vK0)}")
    for jl in range(4): E.dma(vK1, sX, jl * 128, XS + jl * 6144, cfg.xpol, "x")
    E(f"s_lshl_b32 {s(sT1)}, {s(sW)}, 2\ns_add_u32 {s(sT1)}, {s(sT1)}, {FL+16}")
    E(f"v_mov_b32 {v(vFlag)}, {s(sT1)}\nv_mov_b32 {v(vT)}, 0\nds_write_b32 {v(vFlag)}, {v(vT)}")
    E(f"v_and_b32 {v(vPoll)}, 3, {v(vLane)}\nv_lshlrev_b32 {v(vPoll)}, 2, {v(vPoll)}\nv_add_u32 {v(vPoll)}, {FL}, {v(vPoll)}")
    E("s_waitcnt lgkmcnt(0)\ns_barrier")
    E.stamp("start")
    b128_base(E, vK0, vLane, vA, vB2)
    E(f"s_and_b32 {s(sT0)}, {s(sW)}, 1\ns_lshl_b32 {s(sT0)}, {s(sT0)}, 14")
    E(f"v_add_u32 {v(vK0)}, {s(sT0)}, {v(vK0)}\nv_xor_b32 {v(vK1)}, 64, {v(vK0)}")
    E(f"v_add_u32 {v(vK2)}, 0x10000, {v(vK0)}\nv_add_u32 {v(vK3)}, 0x10000, {v(vK1)}")
    E(f"v_lshlrev_b32 {v(vQr)}, 4, {v(vLane)}\nv_add_u32 {v(vQr)}, {QB}, {v(vQr)}")
    E(f"s_lshr_b32 {s(sH)}, {s(sW)}, 1")
    c = math.log2(math.e) / 16.0
    import struct
    cb = struct.unpack('<I', struct.pack('<f', c))[0]
    E(f"s_mov_b32 {s(sC)}, {cb:#x}\ns_mov_b32 {s(sC+1)}, {cb:#x}")
    E.wait_vm(0)
    E.barrier("x")
    def dbg_srd():
        E(f"s_mov_b32 {s(sOut)}, s16\ns_and_b32 {s(sOut+1)}, s17, 0xffff\ns_mov_b32 {s(sOut+2)}, 256\ns_mov_b32 {s(sOut+3)}, 0x20000")
    def inbox_init():
        dbg_srd()
        E(f"s_lshl_b32 {s(sT1)}, {s(sHk)}, 8\nv_lshl_add_u32 {v(vA)}, {v(vLane)}, 2, {s(sT1)}\nv_mov_b32 {v(vB2)}, 0\nv_mov_b32 {v(vM)}, s2\nv_mov_b32 {v(vM+1)}, 1")
        E(f"s_cmp_lg_u32 {s(sW)}, 0\ns_cbranch_scc1 L_ib0\ns_mov_b64 exec, 0xff")
        E(f"buffer_store_dword {v(vB2)}, {v(vA)}, {s(sDbg, 4)}, 0 offen sc1\ns_mov_b64 exec, -1")
        E.label("L_ib0")
    def inbox_ready():
        E(f"s_cmp_lg_u32 {s(sW)}, 0\ns_cbranch_scc1 L_ib1\ns_waitcnt vmcnt(0)\ns_mov_b64 exec, 1")
        E(f"buffer_store_byte {v(vM+1)}, {v(vM)}, {s(sOut, 4)}, 0 offen sc1\ns_mov_b64 exec, -1")
        E.label("L_ib1")
    def inbox_check_issue():
        E(f"s_and_b32 {s(sT0)}, s2, 0xf8\nv_mov_b32 {v(vA)}, {s(sT0)}")
        E(f"s_cmp_lg_u32 {s(sW)}, 0\ns_cbranch_scc1 L_ib2\ns_mov_b64 exec, 1")
        E(f"buffer_load_dwordx2 {v(vM, 2)}, {v(vA)}, {s(sOut, 4)}, 0 offen sc1\ns_mov_b64 exec, -1")
        E.label("L_ib2")
        E.vm = []
    def inbox_check():
        E(f"s_cmp_lg_u32 {s(sW)}, 0\ns_cbranch_scc1 L_ib3\ns_mov_b64 exec, 1")
        E.label("L_ib4")
        E(f"s_waitcnt vmcnt(0)\nv_and_b32 {v(vB2)}, {v(vM)}, {v(vM+1)}\nv_cmp_ne_u32 vcc, 0x01010101, {v(vB2)}\ns_cbranch_vccz L_ib5")
        E(f"buffer_load_dwordx2 {v(vM, 2)}, {v(vA)}, {s(sOut, 4)}, 0 offen sc1")
        E(f"s_sub_u32 {s(sSpin)}, {s(sSpin)}, 1\ns_cbranch_scc1 L_end\ns_branch L_ib4")
        E.label("L_ib5")
        E("s_mov_b64 exec, -1")
        E.label("L_ib3")
        E.vm = []
    def qk(p, hooks={}):
        sl = kslot(p); half = p & 1
        items = [(kt, ss) for kt in range(8) for ss in range(2)]
        def rd(n):
            kt, ss = items[n]
            a = (vK2 if sl >= 65536 else vK0) + ss
            E(f"ds_read_b128 {v(KF + 4*(n % NKF), 4)}, {v(a)} offset:{(sl % 65536) + kt*2048}")
        for n in range(NKF): rd(n)
        for n, (kt, ss) in enumerate(items):
            for t in range(3):
                acc = v(S(half*8 + kt, t), 4)
                E(f"{MF} {acc}, {v(KF + 4*(n % NKF), 4)}, {v(QF + (ss*3+t)*4, 4)}, {acc if (p >= 2 or ss) else 0}")
            if n + NKF < 16: rd(n + NKF)
            if n in hooks: hooks[n]()
    def readq(p):
        E.cond_begin()
        E(f"s_cmp_lg_u32 {s(sH)}, {p & 1}\ns_cbranch_scc1 L_q{p}")
        for i in range(6): E(f"ds_read_b128 {v(QF + 4*i, 4)}, {v(vQr)} offset:{i*1024}")
        E.label(f"L_q{p}")
        E.cond_end()
    for p in range(8):
        E.barrier(f"1_{p}")
        if p and not p & 1: readq(p - 1)
        if p >= 2: qk(p - 2, {cfg.b2q - 1: lambda: E.barrier(f"2_{p}")})
        else: E.barrier(f"2_{p}")
        if p & 1: readq(p - 1)
        E.wait_lgkm(0)
        if p == 7: E.barrier("3_7")
        E.barrier(f"4_{p}")
        if cfg.fused == 2:
            if p == 0: inbox_init()
            if p == 1: inbox_ready()
            if p == 3: inbox_check_issue()
            if p == 4: inbox_check()
    readq(7); qk(6)
    E.barrier("5_7")
    qk(7)
    MX = [vA, vB2, vSw]
    def maxpart(T0, first):
        vals = [[S(T, t, r) for T in range(T0, T0 + 8) for r in range(4)] for t in range(3)]
        for k in range(16):
            for t in range(3):
                if first and k == 0: E(f"v_max_f32 {v(MX[t])}, {v(vals[t][0])}, {v(vals[t][1])}")
                else: E(f"v_max3_f32 {v(MX[t])}, {v(vals[t][2*k])}, {v(vals[t][2*k+1])}, {v(MX[t])}")
    maxpart(0, True)
    maxpart(8, False)
    TM = [KF, KF+1, KF+2]
    for op in ("v_permlane32_swap_b32", "v_permlane16_swap_b32"):
        for t in range(3): E(f"v_mov_b32 {v(TM[t])}, {v(MX[t])}")
        for t in range(3): E(f"{op} {v(MX[t])}, {v(TM[t])}")
        for t in range(3): E(f"v_max_f32 {v(MX[t])}, {v(MX[t])}, {v(TM[t])}")
    NM = [QF + 16, QF + 18, QF + 20]
    LA = QF; ON = QF + 12
    for t in range(3): E(f"v_mul_f32 {v(NM[t])}, {s(sC)}, {v(MX[t])}")
    for i in range(4): E(f"v_mov_b32 {v(ON+i)}, 0x3f803f80")
    E.stamp("max")
    pend = []
    for u in range(8):
        for t in range(3):
            a, b = S(2*u, t), S(2*u+1, t)
            for r in (a, a+2, b, b+2):
                E(f"v_pk_fma_f32 {v(r, 2)}, {v(r, 2)}, {s(sC, 2)}, {v(NM[t], 2)} op_sel_hi:[1,1,0] neg_lo:[0,0,1] neg_hi:[0,0,1]")
            for x in pend: E(x)
            for r in list(range(a, a+4)) + list(range(b, b+4)): E(f"v_exp_f32 {v(r)}, {v(r)}")
            E(f"v_cvt_pk_bf16_f32 {v(a)}, {v(a)}, {v(a+1)}")
            E(f"v_cvt_pk_bf16_f32 {v(a+1)}, {v(a+2)}, {v(a+3)}")
            E(f"v_cvt_pk_bf16_f32 {v(a+2)}, {v(b)}, {v(b+1)}")
            E(f"v_cvt_pk_bf16_f32 {v(a+3)}, {v(b+2)}, {v(b+3)}")
            pend = [f"{MF} {v(LA+4*t, 4)}, {v(ON, 4)}, {v(a, 4)}, {v(LA+4*t, 4) if u else 0}"]
    for x in pend: E(x)
    VA = [vK0, vK1, vK2, vK3]; VB = [KF+16, KF+17, KF+18, KF+19]
    vSt, vXw, vXr = KF+20, KF+21, KF+22
    tr_base(E, vA, vLane, vB2, vT, 1024)
    E(f"s_and_b32 {s(sT0)}, {s(sW)}, 1\ns_lshl_b32 {s(sT1)}, {s(sT0)}, 14\ns_lshl_b32 {s(sT0)}, {s(sT0)}, 6")
    E(f"v_xor_b32 {v(vA)}, {s(sT0)}, {v(vA)}\nv_add_u32 {v(vA)}, {s(sT1)}, {v(vA)}")
    for d in range(4):
        E(f"v_xor_b32 {v(VA[d])}, {d*32}, {v(vA)}\nv_add_u32 {v(VB[d])}, 0x10000, {v(VA[d])}")
    E(f"v_and_b32 {v(vA)}, 15, {v(vLane)}\nv_lshlrev_b32 {v(vA)}, 3, {v(vA)}")
    E(f"s_mul_i32 {s(sT0)}, {s(sW)}, 384\ns_add_u32 {s(sT0)}, {s(sT0)}, {ST}\nv_add_u32 {v(vB2)}, {s(sT0)}, {v(vA)}")
    E(f"s_xor_b32 {s(sT1)}, {s(sW)}, 1\ns_mul_i32 {s(sT0)}, {s(sT1)}, 384\ns_add_u32 {s(sT0)}, {s(sT0)}, {ST}\nv_add_u32 {v(vSt)}, {s(sT0)}, {v(vA)}")
    E(f"v_lshlrev_b32 {v(vA)}, 4, {v(vLane)}")
    E(f"s_mul_i32 {s(sT0)}, {s(sW)}, 6144\ns_add_u32 {s(sT0)}, {s(sT0)}, {XR}\nv_add_u32 {v(vXw)}, {s(sT0)}, {v(vA)}")
    E(f"s_mul_i32 {s(sT0)}, {s(sT1)}, 6144\ns_add_u32 {s(sT0)}, {s(sT0)}, {XR}\nv_add_u32 {v(vXr)}, {s(sT0)}, {v(vA)}")
    for t in range(3):
        E(f"v_mov_b32 {v(NM[t]+1)}, {v(LA+4*t)}")
        E(f"ds_write_b64 {v(vB2)}, {v(NM[t], 2)} offset:{t*128}")
    E.signal("St")
    E.stamp("smax")
    def OA(d, t, r=0): return S(2*d + 1, t, r)
    def PT(i): return S(9 + 2*(i // 3), i % 3)
    VF = [S(13, 0), S(13, 1), S(13, 2), S(15, 0), S(15, 1), S(15, 2), KF, KF+4]
    NVF = 7
    FS = [QF, QF + 2, QF + 4]
    def pv(q):
        half = q & 1; cch = q >> 1
        ad = VB if vslot(q) >= 65536 else VA
        items = [(d, ks) for d in (2, 3, 0, 1) for ks in range(4)]
        def rd(n):
            d, ks = items[n]
            for hf in range(2):
                E(f"ds_read_b64_tr_b16 {v(VF[n % NVF] + 2*hf, 2)}, {v(ad[d])} offset:{ks*4096 + hf*2048}")
        def send(d, t):
            a = OA(d, t)
            for r in (a, a+2): E(f"v_pk_mul_f32 {v(r, 2)}, {v(r, 2)}, {v(FS[t], 2)} op_sel_hi:[1,0]")
            E(f"ds_write_b128 {v(vXw)}, {v(a, 4)} offset:{((d-2)*3+t)*1024}")
        for n in range(NVF): rd(n)
        for n, (d, ks) in enumerate(items):
            for t in range(3):
                acc = v(OA(d, t), 4)
                E(f"{MF} {acc}, {v(VF[n % NVF], 4)}, {v(S(2*(half*4+ks), t), 4)}, {acc if (half or ks) else 0}")
            if n + NVF < 16: rd(n + NVF)
            if q and n == cfg.b1v - 1: E.barrier(f"1_{8+q}")
        if half:
            for d in (2, 3):
                for t in range(3): send(d, t)
            E.wait_lgkm(0)
        if q: E.barrier(f"2_{8+q}")
        if half:
            for i in range(6): E(f"ds_read_b128 {v(PT(i), 4)}, {v(vXr)} offset:{i*1024}")
            for d in range(2):
                for t in range(3):
                    a, b = OA(d, t), PT(d*3+t)
                    for r in (0, 2): E(f"v_pk_fma_f32 {v(a+r, 2)}, {v(a+r, 2)}, {v(FS[t], 2)}, {v(b+r, 2)} op_sel_hi:[1,0,1]")
                    o = OA(0, t) + 2*d
                    E(f"v_cvt_pk_bf16_f32 {v(o)}, {v(a)}, {v(a+1)}\nv_cvt_pk_bf16_f32 {v(o+1)}, {v(a+2)}, {v(a+3)}")
                    if d: E(f"ds_write_b128 {v(vXr)}, {v(OA(0, t), 4)} offset:{t*1024}")
            E.wait_lgkm(0)
            E.barrier(f"3_{8+q}")
    for q in range(8):
        if q == 0: E.wait('P', "Wl8")
        else: E.barrier(f"4_{7+q}")
        pv(q)
        if q == 0:
            E.wait('A', "St")
            for t in range(3): E(f"ds_read_b64 {v(PT(t), 2)}, {v(vSt)} offset:{t*128}")
            for t in range(3):
                pm, pl, mx, eo = PT(t), PT(t)+1, PT(t)+2, PT(t)+3
                E(f"v_max_f32 {v(mx)}, {v(pm)}, {v(NM[t])}")
                E(f"v_sub_f32 {v(eo)}, {v(NM[t])}, {v(mx)}\nv_sub_f32 {v(pm)}, {v(pm)}, {v(mx)}")
                E(f"v_exp_f32 {v(eo)}, {v(eo)}\nv_exp_f32 {v(pm)}, {v(pm)}")
                E(f"v_mul_f32 {v(mx)}, {v(eo)}, {v(NM[t]+1)}\nv_fmac_f32 {v(mx)}, {v(pm)}, {v(pl)}")
                E(f"v_rcp_f32 {v(mx)}, {v(mx)}")
                E(f"v_mul_f32 {v(FS[t])}, {v(eo)}, {v(mx)}")
    final_store(E, cfg, vLane, vA, vB2, S0)
    dump_stamps(E, cfg, vLane, vA)
    E("s_endpgm")
    return E

HEADER = open("cdna_kernels/" + NAME + ".s.ref").read().split("; Override launch")[0] if __name__ == "__main__" or True else ""

def kd(name, vg, sg):
    return f""".p2align 6
.amdhsa_kernel {name}
  .amdhsa_next_free_vgpr {vg}
  .amdhsa_next_free_sgpr {sg}
  .amdhsa_accum_offset {(vg + 3) // 4 * 4}
  .amdhsa_group_segment_fixed_size 0
  .amdhsa_kernarg_size 64
  .amdhsa_user_sgpr_count 2
  .amdhsa_user_sgpr_kernarg_segment_ptr 1
  .amdhsa_system_sgpr_workgroup_id_x 1
  .amdhsa_float_denorm_mode_32 3
.end_amdhsa_kernel
"""

def gen_reduce():
    E = Stream()
    E("s_cmp_ge_u32 s2, 336\ns_cbranch_scc1 L_rend")
    E("s_load_dwordx2 s[4:5], s[0:1], 40\ns_load_dwordx2 s[6:7], s[0:1], 56")
    E("v_lshl_add_u32 v1, s2, 8, v0")
    E(f"s_mov_b32 s16, {-(-(1 << 32) // 2688)}\nv_mul_hi_u32 v2, v1, s16")
    E(f"s_mov_b32 s17, {7*43008}\nv_mul_lo_u32 v2, v2, s17")
    E("v_lshlrev_b32 v1, 4, v1\nv_add_u32 v2, v2, v1")
    E("s_waitcnt lgkmcnt(0)")
    E(f"s_mov_b32 s8, s4\ns_and_b32 s9, s5, 0xffff\ns_mov_b32 s10, {32*43008}\ns_mov_b32 s11, 0x20000")
    E(f"s_mov_b32 s12, s6\ns_and_b32 s13, s7, 0xffff\ns_mov_b32 s14, {256*43008}\ns_mov_b32 s15, 0x20000")
    for h in range(8):
        E(f"s_mov_b32 s16, {h*43008}\nbuffer_load_dwordx4 {v(8+4*h, 4)}, v2, s[12:15], s16 offen")
    for h in range(8):
        for i in range(4):
            r = 8 + 4*h + i
            if h == 0: E(f"v_lshlrev_b32 {v(40+2*i)}, 16, {v(r)}\nv_and_b32 {v(41+2*i)}, 0xffff0000, {v(r)}")
            else:
                E(f"v_lshlrev_b32 v3, 16, {v(r)}\nv_and_b32 v4, 0xffff0000, {v(r)}")
                E(f"v_add_f32 {v(40+2*i)}, {v(40+2*i)}, v3\nv_add_f32 {v(41+2*i)}, {v(41+2*i)}, v4")
    for i in range(4): E(f"v_cvt_pk_bf16_f32 {v(48+i)}, {v(40+2*i)}, {v(41+2*i)}")
    E("buffer_store_dwordx4 v[48:51], v1, s[8:11], 0 offen")
    E.label("L_rend"); E("s_endpgm")
    return E

def gen(cfg):
    ids = {}
    for _ in range(2):
        P = gen_proj(cfg, ids); A = gen_attn(cfg, ids)
    check_deadlock(P, A, ids)
    H = Stream()
    H("s_cmp_ge_u32 s2, 256\ns_cbranch_scc0 L_go")
    H.label("L_end"); H("s_endpgm"); H.label("L_go")
    H("s_load_dwordx16 s[4:19], s[0:1], 0")
    H(f"v_lshrrev_b32 v1, 6, v0\ns_lshr_b32 {s(sB)}, s2, 3\ns_and_b32 {s(sH)}, s2, 7\nv_readfirstlane_b32 {s(sW)}, v1")
    H(f"s_mov_b32 {s(sSpin)}, 0x100000")
    if cfg.stamps:
        H(f"v_mov_b32 v11, 0\ns_memrealtime {s(sSt, 2)}\ns_waitcnt lgkmcnt(0)\nv_writelane_b32 v11, {s(sSt)}, 62")
        H(f"s_memtime {s(sSt, 2)}\ns_waitcnt lgkmcnt(0)\nv_writelane_b32 v11, {s(sSt)}, 61")
    H(f"s_lshl_b32 {s(sT0)}, s2, 18")
    H(f"s_mul_i32 {s(sT1)}, {s(sB)}, 43008\ns_lshl_b32 {s(sT2)}, {s(sH)}, 10\ns_mul_i32 {s(sT3)}, {s(sH)}, 458752")
    for d in (sX, sK, sV, sWq, sWo, sWs): H(f"s_mov_b32 {s(d+3)}, 0x20000")
    H(f"s_mov_b32 {s(sX+2)}, 43008\ns_mov_b32 {s(sK+2)}, 262144\ns_mov_b32 {s(sV+2)}, 262144")
    H(f"s_sub_u32 {s(sWq+2)}, 3670016, {s(sT2)}\ns_mov_b32 {s(sWo+2)}, 458752\ns_mov_b32 {s(sWs+2)}, {8*43008}")
    H(f"s_mul_i32 {s(sOff)}, {s(sB)}, {8*43008}\ns_mov_b32 {s(sHk)}, {s(sH)}")
    H("s_waitcnt lgkmcnt(0)")
    for d, src, off in ((sK, 6, sT0), (sX, 4, sT1), (sWq, 10, sT2), (sV, 8, sT0), (sWo, 12, sT3), (sWs, 18, sOff)):
        H(f"s_add_u32 {s(d)}, {s(src)}, {s(off)}\ns_addc_u32 {s(d+1)}, {s(src+1)}, 0\ns_and_b32 {s(d+1)}, {s(d+1)}, 0xffff")
    if cfg.fused == 1:
        H(f"s_mov_b32 {s(sDbg)}, s16\ns_and_b32 {s(sDbg+1)}, s17, 0xffff\ns_mov_b32 {s(sDbg+2)}, 256\ns_mov_b32 {s(sDbg+3)}, 0x20000")
    if cfg.fused == 2:
        H(f"s_lshl_b32 {s(sOff)}, {s(sB)}, 11\ns_add_u32 {s(sOff)}, {s(sOff)}, {IB_OFF}")
        H(f"s_add_u32 {s(sDbg)}, s18, {s(sOff)}\ns_addc_u32 {s(sDbg+1)}, s19, 0\ns_and_b32 {s(sDbg+1)}, {s(sDbg+1)}, 0xffff\ns_mov_b32 {s(sDbg+2)}, 2048\ns_mov_b32 {s(sDbg+3)}, 0x20000")
    H(f"s_cmp_lt_u32 {s(sW)}, 4\ns_cbranch_scc1 L_attn")
    out = [HEADER.rstrip()]
    if cfg.fused: out.append("; @launch grid=(256,1,1) block=(512,1,1) lds=163840")
    else:
        out.append(f"; @launch kernel={NAME}_kernel grid=(256,1,1) block=(512,1,1) lds=163840")
        out.append(f"; @launch kernel=gqa_reduce_kernel grid=(336,1,1) block=(256,1,1) lds=0")
    out.append('.amdgcn_target "amdgcn-amd-amdhsa--gfx950"\n.text')
    out.append(f".globl {NAME}_kernel\n.p2align 8\n.type {NAME}_kernel,@function\n{NAME}_kernel:")
    out += [H.text(), P.text(), ".p2align 6\nL_attn:", A.text()]
    if not cfg.fused:
        out.append(".globl gqa_reduce_kernel\n.p2align 8\n.type gqa_reduce_kernel,@function\ngqa_reduce_kernel:")
        out.append(gen_reduce().text())
    out.append('.section .rodata,"a"')
    out.append(kd(NAME + "_kernel", 256, 102))
    if not cfg.fused: out.append(kd("gqa_reduce_kernel", 56, 32))
    return "\n".join(out), P.stn, A.stn

if __name__ == "__main__":
    kw = eval("dict(" + (sys.argv[2] if len(sys.argv) > 2 else "") + ")")
    txt, _, _ = gen(Cfg(**kw))
    open(sys.argv[1], "w").write(txt)
```

```python
import sys, math
from asmlib import Stream, v, s
NAME = "standalone__gqa_block_cached__near_ridge"
STAMP_OFF = 0x8000000

SLOT = [0, 32768, 65536]
WB = 98304
QB = 155648
FL = 161792
ST = 161856
XS = 32768
XR = SLOT[1]
TB = SLOT[2]
TP = 912
def kslot(p): return SLOT[p % 3]
def vslot(p): return SLOT[2] if p % 2 == 0 else SLOT[0]

sX, sK, sV, sWq, sWo, sWs, sOut, sDbg = 20, 24, 28, 32, 36, 40, 44, 48
sW, sJ, sOff, sB, sH, sSpin, sC, sT0, sT1, sSt = 52, 53, 54, 55, 56, 57, 58, 60, 61, 62
sT2, sT3 = 64, 65
sHk = 3
IB_OFF = 0x1000000
MF = "v_mfma_f32_16x16x32_bf16"

class Cfg:
    kvpol = "nt"; wpol = ""; xpol = ""; stamps = False; fused = 1
    pre = 4
    b2q = 3
    b1v = 12
    g0 = 4
    kthr = 4
    klpos = 11
    owpos = 5
    fine = None
    sleep = 0
    echo = None
    prio = 1; stpol = 'sc1'; outpol = ''
    pf_w = True; pf_code = False
    def __init__(self, **k):
        for a, b in k.items():
            assert hasattr(self, a), a
            setattr(self, a, b)

class Role(Stream):
    def __init__(self, cls, ids, cfg, vFlag, vPoll, vT, vStamp):
        super().__init__()
        self.cls, self.ids, self.cfg = cls, ids, cfg
        self.vFlag, self.vPoll, self.vT, self.vStamp = vFlag, vPoll, vT, vStamp
        self.n = 0; self.ev = []; self.nl = 0; self.stn = []; self.ast = []
    def signal(self, name):
        self.n += 1
        self.ids[(self.cls, name)] = self.n
        self.ev.append(('sig', name))
        if self.cfg.fine and "sig" + name in self.cfg.fine: self.astamp("sig" + name)
        self(f"v_mov_b32 {v(self.vT)}, {self.n}")
        self(f"ds_write_b32 {v(self.vFlag)}, {v(self.vT)}")
    def wait(self, cls, name, stamp=None):
        idn = self.ids.get((cls, name), 0)
        self.ev.append(('wait', cls, name))
        self.nl += 1
        lab = f"Lw{self.cls}{self.nl}"
        self.label(lab)
        self(f"ds_read_b32 {v(self.vT)}, {v(self.vPoll)} offset:{0 if cls == 'P' else 16}")
        self(f"s_sub_u32 {s(sSpin)}, {s(sSpin)}, 1")
        self("s_cbranch_scc1 L_end")
        self("s_waitcnt lgkmcnt(0)")
        self(f"v_cmp_gt_u32 vcc, {idn}, {v(self.vT)}")
        self(f"s_cbranch_vccnz {lab}")
        if self.cfg.fine:
            if f"{cls}:{name}" in self.cfg.fine: self.astamp(f"{cls}:{name}"); self.flush_ast()
        else: self.stamp(stamp or f"{cls}:{name}")
    def wait2(self, nameP, nameA, vT2):
        self.ev.append(('wait', 'P', nameP)); self.ev.append(('wait', 'A', nameA))
        self.nl += 1
        lab = f"Lw{self.cls}{self.nl}"
        self.label(lab)
        self(f"ds_read_b32 {v(self.vT)}, {v(self.vPoll)}")
        self(f"ds_read_b32 {v(vT2)}, {v(self.vPoll)} offset:16")
        self(f"s_sub_u32 {s(sSpin)}, {s(sSpin)}, 1")
        self("s_cbranch_scc1 L_end")
        self("s_waitcnt lgkmcnt(0)")
        self(f"v_cmp_gt_u32 vcc, {self.ids.get(('P', nameP), 0)}, {v(self.vT)}")
        self(f"s_cbranch_vccnz {lab}")
        self(f"v_cmp_gt_u32 vcc, {self.ids.get(('A', nameA), 0)}, {v(vT2)}")
        self(f"s_cbranch_vccnz {lab}")
        if self.cfg.fine:
            if f"P:{nameP}" in self.cfg.fine: self.astamp(f"P:{nameP}"); self.flush_ast()
        else: self.stamp(f"P:{nameP}")
    def barrier(self, name):
        self.ev.append(('bar', name))
        self("s_barrier")
        if not self.cfg.fine: self.stamp("B:" + name)
        elif "B:" + name in self.cfg.fine: self.astamp("B:" + name); self.flush_ast()
    def stamp(self, name):
        if self.cfg.echo and self.cls == 'P' and name in self.cfg.echo[:2]:
            self(f"s_waitcnt lgkmcnt(0)\ns_memrealtime {s(70 + 2*self.cfg.echo.index(name), 2)}\ns_waitcnt lgkmcnt(0)")
        if not self.cfg.stamps or len(self.stn) >= 61 or (self.cfg.stamps == 'min' and name not in ('start', 'end', 'B:T', 'stored', 'flags')): return
        self("s_waitcnt lgkmcnt(0)")
        self(f"s_memtime {s(sSt, 2)}")
        self("s_waitcnt lgkmcnt(0)")
        self(f"v_writelane_b32 {v(self.vStamp)}, {s(sSt)}, {len(self.stn)}")
        self.stn.append(name)
    def dma(self, voff, srd, soff, lds, pol, tag, sbase=sJ):
        self(f"s_add_u32 m0, {s(sbase)}, {lds}")
        self(f"s_mov_b32 {s(sOff)}, {soff}")
        self(f"buffer_load_dwordx4 {v(voff)}, {s(srd, 4)}, {s(sOff)} offen {pol} lds", tag)
        if self.cfg.fine and tag in self.cfg.fine: self.astamp(tag)
    def astamp(self, name):
        if len(self.ast) < 18:
            self(f"s_memtime {s(66 + 2*len(self.ast), 2)}"); self.ast.append(name)
    def flush_ast(self):
        if not self.ast: return
        self("s_waitcnt lgkmcnt(0)")
        for i, n in enumerate(self.ast):
            if len(self.stn) < 60:
                self(f"v_writelane_b32 {v(self.vStamp)}, {s(66 + 2*i)}, {len(self.stn)}"); self.stn.append(n)
        self.ast = []

def check_deadlock(P, A, ids):
    pos = {'P': 0, 'A': 0}; cnt = {'P': 0, 'A': 0}; ev = {'P': P.ev, 'A': A.ev}
    while True:
        prog = False
        for c in 'PA':
            while pos[c] < len(ev[c]):
                e = ev[c][pos[c]]
                if e[0] == 'sig': cnt[c] += 1
                elif e[0] == 'bar':
                    o = 'A' if c == 'P' else 'P'
                    if pos[o] < len(ev[o]) and ev[o][pos[o]] == e: pos[o] += 1
                    else: break
                else:
                    assert (e[1], e[2]) in ids, e
                    if cnt[e[1]] < ids[(e[1], e[2])]: break
                pos[c] += 1; prog = True
        if all(pos[c] == len(ev[c]) for c in 'PA'): return
        assert prog, ("deadlock", ev['P'][pos['P']:pos['P']+1], ev['A'][pos['A']:pos['A']+1])

def common_lane(E, vLane, vSw):
    E(f"v_and_b32 {v(vLane)}, 63, v0")
    E(f"v_lshrrev_b32 {v(vSw)}, 3, {v(vLane)}")
    E(f"v_and_b32 {v(vSw)}, 6, {v(vSw)}")
    E(f"v_xor_b32 {v(vSw)}, {v(vSw)}, {v(vLane)}")
    E(f"v_and_b32 {v(vSw)}, 7, {v(vSw)}")
    E(f"v_lshlrev_b32 {v(vSw)}, 4, {v(vSw)}")

def tr_base(E, dst, vLane, t1, t2, gmul):
    E(f"v_lshrrev_b32 {v(t1)}, 5, {v(vLane)}")
    E(f"v_mul_u32_u24 {v(dst)}, {gmul}, {v(t1)}")
    E(f"v_bfe_u32 {v(t1)}, {v(vLane)}, 2, 3")
    E(f"v_lshl_add_u32 {v(dst)}, {v(t1)}, 7, {v(dst)}")
    E(f"v_bfe_u32 {v(t1)}, {v(vLane)}, 3, 2")
    E(f"v_lshl_add_u32 {v(dst)}, {v(t1)}, 5, {v(dst)}")
    E(f"v_and_b32 {v(t1)}, 3, {v(vLane)}")
    E(f"v_lshl_add_u32 {v(dst)}, {v(t1)}, 3, {v(dst)}")

def b128_base(E, dst, vLane, t1, t2):
    E(f"v_and_b32 {v(t1)}, 15, {v(vLane)}")
    E(f"v_lshlrev_b32 {v(dst)}, 7, {v(t1)}")
    E(f"v_and_b32 {v(t1)}, 6, {v(vLane)}")
    E(f"v_lshrrev_b32 {v(t2)}, 4, {v(vLane)}")
    E(f"v_xor_b32 {v(t1)}, {v(t1)}, {v(t2)}")
    E(f"v_lshl_add_u32 {v(dst)}, {v(t1)}, 4, {v(dst)}")

def final_store(E, cfg, vLane, vA, vG, tmp):
    c = E.cls
    pol = cfg.stpol if cfg.fused else ""
    E(f"s_mul_i32 {s(sT0)}, {s(sW)}, {6*TP}")
    E(f"s_add_u32 {s(sT0)}, {s(sT0)}, {TB}")
    E(f"v_lshlrev_b32 {v(vG)}, 4, {v(vLane)}")
    E(f"v_add_u32 {v(vA)}, {s(sT0)}, {v(vG)}")
    E(f"s_mul_i32 {s(sT0)}, {s(sW)}, {6*896}\ns_mul_i32 {s(sT1)}, {s(sHk)}, 43008\ns_add_u32 {s(sT0)}, {s(sT0)}, {s(sT1)}")
    E(f"s_add_u32 {s(sT1)}, {s(sT0)}, {4*896}")
    own, acc, vR = tmp + 24, tmp + 60, tmp + 56
    if cfg.fused:
        E(f"s_mul_i32 {s(sT2)}, {s(sHk)}, 6\ns_add_u32 {s(sT2)}, {s(sT2)}, {s(sW)}")
        E(f"s_mul_i32 {s(sT3)}, {s(sT2)}, {TP}\ns_add_u32 {s(sT3)}, {s(sT3)}, {TB}\nv_add_u32 {v(vR)}, {s(sT3)}, {v(vG)}")
        E(f"s_mul_i32 {s(sT2)}, {s(sT2)}, 896\nv_add_u32 {v(vR+1)}, {s(sT2)}, {v(vG)}")
        E(f"v_mov_b32 {v(vR+2)}, 1")
        E(f"s_mul_i32 {s(sT3)}, {s(sB)}, 43008")
        E(f"s_add_u32 {s(sOut)}, s14, {s(sT3)}\ns_addc_u32 {s(sOut+1)}, s15, 0\ns_and_b32 {s(sOut+1)}, {s(sOut+1)}, 0xffff")
        E(f"s_mov_b32 {s(sOut+2)}, 43008\ns_mov_b32 {s(sOut+3)}, 0x20000")
    E.barrier('T')
    E("s_mov_b32 exec_hi, 0x00ffffff")
    if cfg.fused: E(f"s_cmp_eq_u32 {s(sW)}, {s(sHk)}\ns_cbranch_scc1 L_nost{c}")
    for r in range(6): E(f"ds_read_b128 {v(tmp+4*r, 4)}, {v(vA)} offset:{r*TP}")
    for r in range(6):
        E(f"buffer_store_dwordx4 {v(tmp+4*r, 4)}, {v(vG)}, {s(sWs, 4)}, {s(sT0 if r < 4 else sT1)} offen offset:{(r % 4)*896} {pol}")
    if not cfg.fused:
        E("s_mov_b32 exec_hi, -1")
        return
    E.label(f"L_nost{c}")
    E(f"ds_read_b128 {v(own, 4)}, {v(vR)}")
    E("s_waitcnt vmcnt(0)")
    E.stamp("stored")
    if cfg.fused == 1:
        E.barrier('S')
        if c == 'P':
            E(f"s_cmp_lg_u32 {s(sW)}, 7\ns_cbranch_scc1 L_nopoll")
            E(f"v_mov_b32 {v(vA)}, s2\ns_and_b32 {s(sT0)}, s2, 0xf8\nv_mov_b32 {v(vG)}, {s(sT0)}\ns_mov_b64 exec, 1")
            E(f"buffer_store_byte {v(vR+2)}, {v(vA)}, {s(sDbg, 4)}, 0 offen sc1")
            E.label("L_poll")
            E(f"buffer_load_dwordx2 {v(tmp, 2)}, {v(vG)}, {s(sDbg, 4)}, 0 offen sc1")
            E(f"s_sub_u32 {s(sSpin)}, {s(sSpin)}, 1\ns_cbranch_scc1 L_end")
            E(f"s_waitcnt vmcnt(0)\nv_and_b32 {v(tmp)}, {v(tmp)}, {v(tmp+1)}\nv_cmp_ne_u32 vcc, 0x01010101, {v(tmp)}\ns_cbranch_vccnz L_poll")
            E.label("L_nopoll")
        E.barrier('R')
        if c == 'P': E(f"s_cmp_ge_u32 {s(sW)}, 6\ns_cbranch_scc1 L_fin{c}")
    else:
        E(f"s_lshl_b32 {s(sT0)}, {s(sW)}, 8\ns_lshl_b32 {s(sT1)}, {s(sHk)}, 2\ns_add_u32 {s(sT0)}, {s(sT0)}, {s(sT1)}")
        E(f"v_mov_b32 {v(vA)}, {s(sT0)}\ns_lshl_b32 {s(sT1)}, {s(sHk)}, 8")
        E(f"v_and_b32 {v(vG)}, 7, {v(vLane)}\nv_lshl_add_u32 {v(vG)}, {v(vG)}, 2, {s(sT1)}")
        E(f"s_mov_b64 exec, 1\nbuffer_store_dword {v(vR+2)}, {v(vA)}, {s(sDbg, 4)}, 0 offen sc1")
        if c == 'P': E(f"s_cmp_ge_u32 {s(sW)}, 6\ns_cbranch_scc1 L_fin{c}")
        E("s_mov_b64 exec, 0xff")
        E.label(f"L_poll{c}")
        E(f"buffer_load_dword {v(tmp)}, {v(vG)}, {s(sDbg, 4)}, 0 offen sc1")
        E(f"s_sub_u32 {s(sSpin)}, {s(sSpin)}, 1\ns_cbranch_scc1 L_end")
        E(f"s_waitcnt vmcnt(0)\nv_cmp_ne_u32 vcc, 1, {v(tmp)}\ns_cbranch_vccnz L_poll{c}")
        E("s_mov_b32 exec_lo, -1\ns_mov_b32 exec_hi, 0x00ffffff")
    E.stamp("flags")
    for k in range(1, 8):
        E(f"s_add_u32 {s(sT0)}, {s(sHk)}, {k}\ns_and_b32 {s(sT0)}, {s(sT0)}, 7\ns_mul_i32 {s(sT0)}, {s(sT0)}, 43008")
        E(f"buffer_load_dwordx4 {v(own + 4*k, 4)}, {v(vR+1)}, {s(sWs, 4)}, {s(sT0)} offen sc1")
    for k in range(8):
        for i in range(4):
            r = own + 4*k + i
            if k == 0: E(f"v_lshlrev_b32 {v(acc+2*i)}, 16, {v(r)}\nv_and_b32 {v(acc+2*i+1)}, 0xffff0000, {v(r)}")
            else:
                E(f"v_lshlrev_b32 {v(tmp)}, 16, {v(r)}\nv_and_b32 {v(tmp+1)}, 0xffff0000, {v(r)}")
                E(f"v_pk_add_f32 {v(acc+2*i, 2)}, {v(acc+2*i, 2)}, {v(tmp, 2)}")
    for i in range(4): E(f"v_cvt_pk_bf16_f32 {v(tmp+4+i)}, {v(acc+2*i)}, {v(acc+2*i+1)}")
    E(f"buffer_store_dwordx4 {v(tmp+4, 4)}, {v(vR+1)}, {s(sOut, 4)}, 0 offen {cfg.outpol}")
    E.label(f"L_fin{c}")
    E("s_mov_b64 exec, -1")

def dump_stamps(E, cfg, vLane, t):
    if cfg.echo and E.cls == 'P':
        E(f"s_cmp_lg_u32 {s(sW)}, 4\ns_cbranch_scc1 L_end")
        E.wait_vm(0, force=True)
        E.stamp("end")
        E(f"s_sub_u32 s70, s72, s70\ns_mul_i32 s70, s70, {cfg.echo[2]}\ns_min_u32 s70, s70, 100000\ns_memrealtime s[72:73]\ns_waitcnt lgkmcnt(0)")
        E("L_echo:\ns_memrealtime s[74:75]\ns_waitcnt lgkmcnt(0)\ns_sub_u32 s74, s74, s72\ns_cmp_lt_u32 s74, s70\ns_cbranch_scc1 L_echo")
    if not cfg.stamps: return
    E.wait_vm(0, force=True)
    E.stamp("end")
    E(f"s_memrealtime {s(sSt, 2)}\ns_waitcnt lgkmcnt(0)\nv_writelane_b32 {v(E.vStamp)}, {s(sSt)}, 63")
    E(f"s_lshl_b32 {s(sT0)}, s2, 3\ns_add_u32 {s(sT0)}, {s(sT0)}, {s(sW)}\ns_lshl_b32 {s(sT0)}, {s(sT0)}, 8")
    E(f"s_add_u32 {s(sOut)}, s18, {STAMP_OFF}\ns_addc_u32 {s(sOut+1)}, s19, 0\ns_and_b32 {s(sOut+1)}, {s(sOut+1)}, 0xffff")
    E(f"s_mov_b32 {s(sOut+2)}, {256*8*256}\ns_mov_b32 {s(sOut+3)}, 0x20000")
    E(f"v_lshlrev_b32 {v(t)}, 2, {v(vLane)}")
    E(f"buffer_store_dword {v(E.vStamp)}, {v(t)}, {s(sOut, 4)}, {s(sT0)} offen")

def gen_proj(cfg, ids):
    vLane, vSw, vKV, vWq, vWo, vWqRd, vQwr, vFlag, vPoll, vT, vStamp, vA, vB2 = 1, 2, 3, 4, 5, 6, 7, 8, 9, 10, 11, 12, 13
    XF = 16; WA = 184; QA = 240
    OUT = 16; OF = 100; WBs = 128; WR = 240
    vOr, vTw = 247, 248
    E = Role('P', ids, cfg, vFlag, vPoll, vT, vStamp)
    if cfg.prio: E(f"s_setprio {cfg.prio}")
    E(f"s_sub_u32 {s(sT0)}, {s(sW)}, 4")
    E(f"s_lshl_b32 {s(sJ)}, {s(sT0)}, 10")
    common_lane(E, vLane, vSw)
    E(f"v_lshrrev_b32 {v(vA)}, 3, {v(vLane)}")
    E(f"v_lshl_add_u32 {v(vKV)}, {v(vA)}, 9, {v(vSw)}")
    E(f"s_lshl_b32 {s(sT1)}, {s(sT0)}, 12")
    E(f"v_add_u32 {v(vKV)}, {s(sT1)}, {v(vKV)}")
    def issueK(p, lo=0, hi=8):
        for i in range(lo, hi):
            if i == 0 and p == 9: E.wait_vm(cfg.kthr)
            if p < 8: E.dma(vKV, sK, ((p & 1) * 256 + 32 * i) * 512 + (p >> 1) * 128, kslot(p) + 4096 * i, cfg.kvpol, f"K{p}")
            else:
                q = p - 8
                E.dma(vKV, sV, ((q & 1) * 256 + 32 * i) * 512 + (q >> 1) * 128, vslot(q) + 4096 * i, cfg.kvpol, f"K{p}")
    def issueW(p, lo=0, hi=14):
        for i in range(lo, hi):
            if p < 8: E.dma(vWq, sWq, 32 * i * 8192 + (p & 1) * 512 + (p >> 1) * 128, WB + 4096 * i, cfg.wpol, f"W{p}")
            else:
                q = p - 8
                E.dma(vWo, sWo, ((q & 1) * 256 + 64 * (q >> 1) + 32 * (i // 7)) * 896 + (i % 7) * 128, WB + 4096 * i, cfg.wpol, f"W{p}")
    issueK(0)
    E(f"v_and_b32 {v(vB2)}, 4, {v(vA)}")
    E(f"v_add_u32 {v(vB2)}, {v(vB2)}, {v(vA)}")
    E(f"s_lshr_b32 {s(sT1)}, {s(sT0)}, 1\ns_lshl_b32 {s(sT1)}, {s(sT1)}, 4")
    E(f"s_and_b32 {s(sT2)}, {s(sT0)}, 1\ns_lshl_b32 {s(sT2)}, {s(sT2)}, 2\ns_add_u32 {s(sT1)}, {s(sT1)}, {s(sT2)}")
    E(f"v_add_u32 {v(vB2)}, {s(sT1)}, {v(vB2)}")
    E(f"v_lshl_add_u32 {v(vWq)}, {v(vB2)}, 13, {v(vSw)}")
    E(f"s_lshl_b32 {s(sT1)}, {s(sT0)}, 2\ns_add_u32 {s(sT1)}, {s(sT1)}, {FL}")
    E(f"v_mov_b32 {v(vFlag)}, {s(sT1)}\nv_mov_b32 {v(vT)}, 0\nds_write_b32 {v(vFlag)}, {v(vT)}")
    E(f"v_and_b32 {v(vPoll)}, 3, {v(vLane)}\nv_lshlrev_b32 {v(vPoll)}, 2, {v(vPoll)}\nv_add_u32 {v(vPoll)}, {FL}, {v(vPoll)}")
    E("s_waitcnt lgkmcnt(0)\ns_barrier")
    E.stamp("start")
    issueW(0)
    E(f"s_lshl_b32 {s(sT1)}, {s(sT0)}, 3\nv_add_u32 {v(vB2)}, {s(sT1)}, {v(vA)}")
    E(f"v_mul_u32_u24 {v(vWo)}, 896, {v(vB2)}\nv_add_u32 {v(vWo)}, {v(vWo)}, {v(vSw)}")
    tr_base(E, vWqRd, vLane, vA, vB2, 2048)
    E(f"s_lshl_b32 {s(sT1)}, {s(sT0)}, 5\nv_xor_b32 {v(vWqRd)}, {s(sT1)}, {v(vWqRd)}\nv_add_u32 {v(vWqRd)}, {WB}, {v(vWqRd)}")
    E(f"v_and_b32 {v(vA)}, 15, {v(vLane)}\nv_lshlrev_b32 {v(vQwr)}, 4, {v(vA)}")
    E(f"v_lshrrev_b32 {v(vA)}, 5, {v(vLane)}\nv_lshl_add_u32 {v(vQwr)}, {v(vA)}, 8, {v(vQwr)}")
    E(f"v_bfe_u32 {v(vA)}, {v(vLane)}, 4, 1\nv_lshl_add_u32 {v(vQwr)}, {v(vA)}, 3, {v(vQwr)}")
    E(f"s_lshr_b32 {s(sT1)}, {s(sT0)}, 1\ns_mul_i32 {s(sT1)}, {s(sT1)}, 3072")
    E(f"s_and_b32 {s(sT2)}, {s(sT0)}, 1\ns_lshl_b32 {s(sT2)}, {s(sT2)}, 9\ns_add_u32 {s(sT1)}, {s(sT1)}, {s(sT2)}\ns_add_u32 {s(sT1)}, {s(sT1)}, {QB}")
    E(f"v_add_u32 {v(vQwr)}, {s(sT1)}, {v(vQwr)}")
    b128_base(E, vA, vLane, vB2, vT)
    E(f"v_add_u32 {v(vA)}, {XS}, {v(vA)}\nv_xor_b32 {v(vB2)}, 64, {v(vA)}")
    E.barrier('x')
    for ks in range(14):
        for t in range(3):
            E(f"ds_read_b128 {v(XF + (ks*3+t)*4, 4)}, {v(vB2 if ks & 1 else vA)} offset:{(ks >> 1)*6144 + t*2048}")
    def w_landed(p):
        E.wait_tag(f"W{p}")
        E.signal(f"Wl{p}"); E.wait('P', f"Wl{p}")
    def interleave(dmas, groups, pre, hooks):
        nd = 0; gi = 0
        def one():
            nonlocal nd
            dmas[nd](); nd += 1
            if nd in hooks: hooks[nd]()
        if 0 in hooks: hooks[0]()
        while nd < min(pre, len(dmas)): one()
        rest = len(dmas) - nd
        for k, g in enumerate(groups):
            g()
            want = pre + (k + 1) * rest // len(groups) if rest else 0
            while nd < min(want, len(dmas)): one()
        while nd < len(dmas): one()
    def qwrite():
        for t in range(3):
            E(f"v_cvt_pk_bf16_f32 {v(QA+4*t)}, {v(QA+4*t)}, {v(QA+4*t+1)}")
            E(f"v_cvt_pk_bf16_f32 {v(QA+4*t+1)}, {v(QA+4*t+2)}, {v(QA+4*t+3)}")
            E(f"ds_write_b64 {v(vQwr)}, {v(QA+4*t, 2)} offset:{t*1024}")
    for p in range(8):
        E.wait_tag(f"W{p}")
        if p: E.wait_lgkm(0)
        E.barrier(f"1_{p}")
        for i in range(14):
            for hf in range(2):
                E(f"ds_read_b64_tr_b16 {v(WA + 4*i + 2*hf, 2)}, {v(vWqRd)} offset:{i*4096 + hf*1024}")
        def grp(i):
            for t in range(3):
                E(f"{MF} {v(QA+4*t, 4)}, {v(WA+4*i, 4)}, {v(XF+(i*3+t)*4, 4)}, {v(QA+4*t, 4) if i else 0}")
        for i in range(cfg.g0): grp(i)
        E.wait_lgkm(0)
        E.barrier(f"2_{p}")
        groups = [lambda i=i: grp(i) for i in range(cfg.g0, 14)]
        if p < 7:
            interleave([lambda i=i: issueW(p + 1, i, i + 1) for i in range(14)], groups, cfg.pre, {})
            E.barrier(f"4_{p}")
            issueK(p + 1)
            qwrite()
        else:
            for g in groups: g()
            E.barrier("3_7")
            issueK(8, 0, 4)
            qwrite(); E.wait_lgkm(0)
            E.barrier("4_7")
            issueK(8, 4, 8)
    tr_base(E, vA, vLane, vB2, vT, 1024)
    E(f"s_lshr_b32 {s(sT0)}, {s(sJ)}, 10\ns_mul_i32 {s(sT0)}, {s(sT0)}, 7")
    for i in range(7):
        E(f"s_add_u32 {s(sT1)}, {s(sT0)}, {i}\ns_and_b32 {s(sT2)}, {s(sT1)}, 3\ns_lshl_b32 {s(sT2)}, {s(sT2)}, 5")
        E(f"s_lshr_b32 {s(sT1)}, {s(sT1)}, 2\ns_lshl_b32 {s(sT1)}, {s(sT1)}, 12\ns_add_u32 {s(sT1)}, {s(sT1)}, {WB}")
        E(f"v_xor_b32 {v(WR+i)}, {s(sT2)}, {v(vA)}\nv_add_u32 {v(WR+i)}, {s(sT1)}, {v(WR+i)}")
    E(f"v_lshlrev_b32 {v(vOr)}, 4, {v(vLane)}\nv_add_u32 {v(vOr)}, {XR}, {v(vOr)}")
    E(f"v_and_b32 {v(vA)}, 15, {v(vLane)}\nv_mul_u32_u24 {v(vTw)}, {TP}, {v(vA)}")
    E(f"v_lshrrev_b32 {v(vA)}, 4, {v(vLane)}\nv_lshl_add_u32 {v(vTw)}, {v(vA)}, 3, {v(vTw)}")
    E(f"s_lshl_b32 {s(sT0)}, {s(sT0)}, 5\ns_add_u32 {s(sT0)}, {s(sT0)}, {TB}\nv_add_u32 {v(vTw)}, {s(sT0)}, {v(vTw)}")
    E.wait_tag("K7")
    E.barrier("5_7")
    issueW(8)
    issueK(9)
    def wset(q): return WA if q % 2 == 0 else WBs
    def read_of(q, dst):
        h = q & 1
        for ks in range(2):
            for t in range(3):
                E(f"ds_read_b128 {v(dst + (ks*3+t)*4, 4)}, {v(vOr)} offset:{(h*2 + (ks ^ 1))*6144 + t*1024}")
    def ogrp(q, of, i, ks):
        for t in range(3):
            acc = v(OUT + (i*3+t)*4, 4)
            E(f"{MF} {acc}, {v(wset(q) + (ks*7+i)*4, 4)}, {v(of + (ks*3+t)*4, 4)}, {acc if (q or ks) else 0}")
    def oproj(q, of, last=False, hook=None):
        for i in range(7):
            for ks in range(2): ogrp(q, of, i, ks)
            if hook: hook(i)
    for q in range(8):
        p = 8 + q
        if q == 0: w_landed(p)
        else:
            E.wait_tag(f"W{p}"); E.barrier(f"1_{p}")
        if q and not q & 1: read_of(q - 1, OF)
        for i in range(7):
            for ks in range(2):
                for hf in range(2):
                    E(f"ds_read_b64_tr_b16 {v(wset(q) + (ks*7+i)*4 + 2*hf, 2)}, {v(WR+i)} offset:{ks*28672 + hf*2048}")
        groups = [lambda i=i, ks=ks: ogrp(q - 1, OF, i, ks) for i in range(7) for ks in range(2)] if q else []
        if q == 0:
            E.signal(f"Wr{p}"); E.wait('P', f"Wr{p}")
        else:
            E.wait_lgkm(0); E.barrier(f"2_{p}")
        if q == 7:
            E.barrier(f"3_{p}"); read_of(6, OF)
            oproj(6, OF, hook=lambda i: read_of(7, WA) if i == 5 else None)
            break
        dw = [lambda i=i: issueW(p + 1, i, i + 1) for i in range(14)]
        def geto():
            E.barrier(f"3_{p}"); read_of(q - 1, OF)
        interleave(dw, groups, cfg.pre + (1 if q & 1 else 0), {cfg.pre: geto} if q & 1 else {})
        E.wait_tag(f"K{p+1}")
        E.barrier(f"4_{p}")
        if q < 6: issueK(p + 2)
    def fin(i):
        if i == 0: return
        emit_T(i - 1)
    def emit_T(i):
        for t in range(3):
            a = OUT + (i*3+t)*4
            E(f"v_cvt_pk_bf16_f32 {v(a)}, {v(a)}, {v(a+1)}")
            E(f"v_cvt_pk_bf16_f32 {v(a+1)}, {v(a+2)}, {v(a+3)}")
            E(f"ds_write_b64 {v(vTw)}, {v(a, 2)} offset:{t*16*TP + i*32}")
    oproj(7, WA, hook=fin)
    emit_T(6)
    E.wait_lgkm(0)
    final_store(E, cfg, vLane, vA, vB2, WBs)
    dump_stamps(E, cfg, vLane, vA)
    E("s_endpgm")
    return E

def gen_attn(cfg, ids):
    vLane, vSw, vK0, vK1, vK2, vK3, vQr, vFlag, vPoll, vT, vStamp, vA, vB2 = 1, 2, 3, 4, 5, 6, 7, 8, 9, 10, 11, 12, 13
    vM = 14
    S0 = 16; QF = 208; KF = 232; NKF = 6
    def S(T, t, r=0): return S0 + (T*3 + t)*4 + r
    E = Role('A', ids, cfg, vFlag, vPoll, vT, vStamp)
    common_lane(E, vLane, vSw)
    E(f"v_lshrrev_b32 {v(vA)}, 3, {v(vLane)}")
    if cfg.pf_w:
        E(f"s_and_b32 {s(sT0)}, {s(sW)}, 1\ns_lshl_b32 {s(sT1)}, {s(sB)}, 1\ns_add_u32 {s(sT0)}, {s(sT0)}, {s(sT1)}\ns_mul_i32 {s(sT0)}, {s(sT0)}, 7")
        E(f"v_and_b32 {v(vB2)}, 7, {v(vLane)}\nv_lshlrev_b32 {v(vB2)}, 7, {v(vB2)}\nv_lshl_add_u32 {v(vB2)}, {v(vA)}, 13, {v(vB2)}")
        E(f"v_lshlrev_b32 {v(vT)}, 7, {v(vLane)}")
        E(f"s_lshl_b32 {s(sT1)}, {s(sT0)}, 13\ns_lshl_b32 {s(sT2)}, {s(sT0)}, 10")
        E("s_mov_b32 exec_hi, 0x00ffffff")
        E(f"s_cmp_ge_u32 {s(sW)}, 2\ns_cbranch_scc1 L_pfo")
        E.raw(f"buffer_load_dword {v(vM)}, {v(vB2)}, {s(sWq, 4)}, {s(sT1)} offen\ns_branch L_pfd\nL_pfo:")
        E(f"buffer_load_dword {v(vM)}, {v(vT)}, {s(sWo, 4)}, {s(sT2)} offen")
        E.label("L_pfd")
        E("s_mov_b32 exec_hi, -1")
    E(f"v_mul_u32_u24 {v(vK0)}, 896, {v(vA)}\nv_add_u32 {v(vK0)}, {v(vK0)}, {v(vSw)}")
    E(f"s_mul_i32 {s(sT0)}, {s(sW)}, {8*896}\nv_add_u32 {v(vK1)}, {s(sT0)}, {v(vK0)}")
    E(f"s_lshl_b32 {s(sJ)}, {s(sW)}, 10")
    for jl in range(7): E.dma(vK1, sX, jl * 128, XS + jl * 6144, cfg.xpol, "x")
    E(f"s_lshr_b32 {s(sT0)}, {s(sW)}, 1\ns_add_u32 {s(sT0)}, {s(sT0)}, 4\ns_and_b32 {s(sT1)}, {s(sW)}, 1")
    E(f"s_lshl_b32 {s(sJ)}, {s(sT0)}, 10\ns_mul_i32 {s(sT2)}, {s(sT1)}, {3*6144}\ns_add_u32 {s(sJ)}, {s(sJ)}, {s(sT2)}")
    E(f"s_mul_i32 {s(sT0)}, {s(sT0)}, {8*896}\ns_mul_i32 {s(sT1)}, {s(sT1)}, 384\ns_add_u32 {s(sT0)}, {s(sT0)}, {s(sT1)}")
    E(f"v_add_u32 {v(vK1)}, {s(sT0)}, {v(vK0)}")
    for jl in range(4): E.dma(vK1, sX, jl * 128, XS + jl * 6144, cfg.xpol, "x")
    E(f"s_lshl_b32 {s(sT1)}, {s(sW)}, 2\ns_add_u32 {s(sT1)}, {s(sT1)}, {FL+16}")
    E(f"v_mov_b32 {v(vFlag)}, {s(sT1)}\nv_mov_b32 {v(vT)}, 0\nds_write_b32 {v(vFlag)}, {v(vT)}")
    E(f"v_and_b32 {v(vPoll)}, 3, {v(vLane)}\nv_lshlrev_b32 {v(vPoll)}, 2, {v(vPoll)}\nv_add_u32 {v(vPoll)}, {FL}, {v(vPoll)}")
    E("s_waitcnt lgkmcnt(0)\ns_barrier")
    E.stamp("start")
    b128_base(E, vK0, vLane, vA, vB2)
    E(f"s_and_b32 {s(sT0)}, {s(sW)}, 1\ns_lshl_b32 {s(sT0)}, {s(sT0)}, 14")
    E(f"v_add_u32 {v(vK0)}, {s(sT0)}, {v(vK0)}\nv_xor_b32 {v(vK1)}, 64, {v(vK0)}")
    E(f"v_add_u32 {v(vK2)}, 0x10000, {v(vK0)}\nv_add_u32 {v(vK3)}, 0x10000, {v(vK1)}")
    E(f"v_lshlrev_b32 {v(vQr)}, 4, {v(vLane)}\nv_add_u32 {v(vQr)}, {QB}, {v(vQr)}")
    E(f"s_lshr_b32 {s(sH)}, {s(sW)}, 1")
    c = math.log2(math.e) / 16.0
    import struct
    cb = struct.unpack('<I', struct.pack('<f', c))[0]
    E(f"s_mov_b32 {s(sC)}, {cb:#x}\ns_mov_b32 {s(sC+1)}, {cb:#x}")
    E.wait_vm(0)
    E.barrier("x")
    def dbg_srd():
        E(f"s_mov_b32 {s(sOut)}, s16\ns_and_b32 {s(sOut+1)}, s17, 0xffff\ns_mov_b32 {s(sOut+2)}, 256\ns_mov_b32 {s(sOut+3)}, 0x20000")
    def inbox_init():
        dbg_srd()
        E(f"s_lshl_b32 {s(sT1)}, {s(sHk)}, 8\nv_lshl_add_u32 {v(vA)}, {v(vLane)}, 2, {s(sT1)}\nv_mov_b32 {v(vB2)}, 0\nv_mov_b32 {v(vM)}, s2\nv_mov_b32 {v(vM+1)}, 1")
        E(f"s_cmp_lg_u32 {s(sW)}, 0\ns_cbranch_scc1 L_ib0\ns_mov_b64 exec, 0xff")
        E(f"buffer_store_dword {v(vB2)}, {v(vA)}, {s(sDbg, 4)}, 0 offen sc1\ns_mov_b64 exec, -1")
        E.label("L_ib0")
    def inbox_ready():
        E(f"s_cmp_lg_u32 {s(sW)}, 0\ns_cbranch_scc1 L_ib1\ns_waitcnt vmcnt(0)\ns_mov_b64 exec, 1")
        E(f"buffer_store_byte {v(vM+1)}, {v(vM)}, {s(sOut, 4)}, 0 offen sc1\ns_mov_b64 exec, -1")
        E.label("L_ib1")
    def inbox_check_issue():
        E(f"s_and_b32 {s(sT0)}, s2, 0xf8\nv_mov_b32 {v(vA)}, {s(sT0)}")
        E(f"s_cmp_lg_u32 {s(sW)}, 0\ns_cbranch_scc1 L_ib2\ns_mov_b64 exec, 1")
        E(f"buffer_load_dwordx2 {v(vM, 2)}, {v(vA)}, {s(sOut, 4)}, 0 offen sc1\ns_mov_b64 exec, -1")
        E.label("L_ib2")
        E.vm = []
    def inbox_check():
        E(f"s_cmp_lg_u32 {s(sW)}, 0\ns_cbranch_scc1 L_ib3\ns_mov_b64 exec, 1")
        E.label("L_ib4")
        E(f"s_waitcnt vmcnt(0)\nv_and_b32 {v(vB2)}, {v(vM)}, {v(vM+1)}\nv_cmp_ne_u32 vcc, 0x01010101, {v(vB2)}\ns_cbranch_vccz L_ib5")
        E(f"buffer_load_dwordx2 {v(vM, 2)}, {v(vA)}, {s(sOut, 4)}, 0 offen sc1")
        E(f"s_sub_u32 {s(sSpin)}, {s(sSpin)}, 1\ns_cbranch_scc1 L_end\ns_branch L_ib4")
        E.label("L_ib5")
        E("s_mov_b64 exec, -1")
        E.label("L_ib3")
        E.vm = []
    def qk(p, hooks={}):
        sl = kslot(p); half = p & 1
        items = [(kt, ss) for kt in range(8) for ss in range(2)]
        def rd(n):
            kt, ss = items[n]
            a = (vK2 if sl >= 65536 else vK0) + ss
            E(f"ds_read_b128 {v(KF + 4*(n % NKF), 4)}, {v(a)} offset:{(sl % 65536) + kt*2048}")
        for n in range(NKF): rd(n)
        for n, (kt, ss) in enumerate(items):
            for t in range(3):
                acc = v(S(half*8 + kt, t), 4)
                E(f"{MF} {acc}, {v(KF + 4*(n % NKF), 4)}, {v(QF + (ss*3+t)*4, 4)}, {acc if (p >= 2 or ss) else 0}")
            if n + NKF < 16: rd(n + NKF)
            if n in hooks: hooks[n]()
    def readq(p):
        E.cond_begin()
        E(f"s_cmp_lg_u32 {s(sH)}, {p & 1}\ns_cbranch_scc1 L_q{p}")
        for i in range(6): E(f"ds_read_b128 {v(QF + 4*i, 4)}, {v(vQr)} offset:{i*1024}")
        E.label(f"L_q{p}")
        E.cond_end()
    for p in range(8):
        E.barrier(f"1_{p}")
        if p and not p & 1: readq(p - 1)
        if p >= 2: qk(p - 2, {cfg.b2q - 1: lambda: E.barrier(f"2_{p}")})
        else: E.barrier(f"2_{p}")
        if p & 1: readq(p - 1)
        E.wait_lgkm(0)
        if p == 7: E.barrier("3_7")
        E.barrier(f"4_{p}")
        if cfg.fused == 2:
            if p == 0: inbox_init()
            if p == 1: inbox_ready()
            if p == 3: inbox_check_issue()
            if p == 4: inbox_check()
    readq(7); qk(6)
    E.barrier("5_7")
    qk(7)
    MX = [vA, vB2, vSw]
    def maxpart(T0, first):
        vals = [[S(T, t, r) for T in range(T0, T0 + 8) for r in range(4)] for t in range(3)]
        for k in range(16):
            for t in range(3):
                if first and k == 0: E(f"v_max_f32 {v(MX[t])}, {v(vals[t][0])}, {v(vals[t][1])}")
                else: E(f"v_max3_f32 {v(MX[t])}, {v(vals[t][2*k])}, {v(vals[t][2*k+1])}, {v(MX[t])}")
    maxpart(0, True)
    maxpart(8, False)
    TM = [KF, KF+1, KF+2]
    for op in ("v_permlane32_swap_b32", "v_permlane16_swap_b32"):
        for t in range(3): E(f"v_mov_b32 {v(TM[t])}, {v(MX[t])}")
        for t in range(3): E(f"{op} {v(MX[t])}, {v(TM[t])}")
        for t in range(3): E(f"v_max_f32 {v(MX[t])}, {v(MX[t])}, {v(TM[t])}")
    NM = [QF + 16, QF + 18, QF + 20]
    LA = QF; ON = QF + 12
    for t in range(3): E(f"v_mul_f32 {v(NM[t])}, {s(sC)}, {v(MX[t])}")
    for i in range(4): E(f"v_mov_b32 {v(ON+i)}, 0x3f803f80")
    E.stamp("max")
    pend = []
    for u in range(8):
        for t in range(3):
            a, b = S(2*u, t), S(2*u+1, t)
            for r in (a, a+2, b, b+2):
                E(f"v_pk_fma_f32 {v(r, 2)}, {v(r, 2)}, {s(sC, 2)}, {v(NM[t], 2)} op_sel_hi:[1,1,0] neg_lo:[0,0,1] neg_hi:[0,0,1]")
            for x in pend: E(x)
            for r in list(range(a, a+4)) + list(range(b, b+4)): E(f"v_exp_f32 {v(r)}, {v(r)}")
            E(f"v_cvt_pk_bf16_f32 {v(a)}, {v(a)}, {v(a+1)}")
            E(f"v_cvt_pk_bf16_f32 {v(a+1)}, {v(a+2)}, {v(a+3)}")
            E(f"v_cvt_pk_bf16_f32 {v(a+2)}, {v(b)}, {v(b+1)}")
            E(f"v_cvt_pk_bf16_f32 {v(a+3)}, {v(b+2)}, {v(b+3)}")
            pend = [f"{MF} {v(LA+4*t, 4)}, {v(ON, 4)}, {v(a, 4)}, {v(LA+4*t, 4) if u else 0}"]
    for x in pend: E(x)
    VA = [vK0, vK1, vK2, vK3]; VB = [KF+16, KF+17, KF+18, KF+19]
    vSt, vXw, vXr = KF+20, KF+21, KF+22
    tr_base(E, vA, vLane, vB2, vT, 1024)
    E(f"s_and_b32 {s(sT0)}, {s(sW)}, 1\ns_lshl_b32 {s(sT1)}, {s(sT0)}, 14\ns_lshl_b32 {s(sT0)}, {s(sT0)}, 6")
    E(f"v_xor_b32 {v(vA)}, {s(sT0)}, {v(vA)}\nv_add_u32 {v(vA)}, {s(sT1)}, {v(vA)}")
    for d in range(4):
        E(f"v_xor_b32 {v(VA[d])}, {d*32}, {v(vA)}\nv_add_u32 {v(VB[d])}, 0x10000, {v(VA[d])}")
    E(f"v_and_b32 {v(vA)}, 15, {v(vLane)}\nv_lshlrev_b32 {v(vA)}, 3, {v(vA)}")
    E(f"s_mul_i32 {s(sT0)}, {s(sW)}, 384\ns_add_u32 {s(sT0)}, {s(sT0)}, {ST}\nv_add_u32 {v(vB2)}, {s(sT0)}, {v(vA)}")
    E(f"s_xor_b32 {s(sT1)}, {s(sW)}, 1\ns_mul_i32 {s(sT0)}, {s(sT1)}, 384\ns_add_u32 {s(sT0)}, {s(sT0)}, {ST}\nv_add_u32 {v(vSt)}, {s(sT0)}, {v(vA)}")
    E(f"v_lshlrev_b32 {v(vA)}, 4, {v(vLane)}")
    E(f"s_mul_i32 {s(sT0)}, {s(sW)}, 6144\ns_add_u32 {s(sT0)}, {s(sT0)}, {XR}\nv_add_u32 {v(vXw)}, {s(sT0)}, {v(vA)}")
    E(f"s_mul_i32 {s(sT0)}, {s(sT1)}, 6144\ns_add_u32 {s(sT0)}, {s(sT0)}, {XR}\nv_add_u32 {v(vXr)}, {s(sT0)}, {v(vA)}")
    for t in range(3):
        E(f"v_mov_b32 {v(NM[t]+1)}, {v(LA+4*t)}")
        E(f"ds_write_b64 {v(vB2)}, {v(NM[t], 2)} offset:{t*128}")
    E.signal("St")
    E.stamp("smax")
    def OA(d, t, r=0): return S(2*d + 1, t, r)
    def PT(i): return S(9 + 2*(i // 3), i % 3)
    VF = [S(13, 0), S(13, 1), S(13, 2), S(15, 0), S(15, 1), S(15, 2), KF, KF+4]
    NVF = 7
    FS = [QF, QF + 2, QF + 4]
    def pv(q):
        half = q & 1; cch = q >> 1
        ad = VB if vslot(q) >= 65536 else VA
        items = [(d, ks) for d in (2, 3, 0, 1) for ks in range(4)]
        def rd(n):
            d, ks = items[n]
            for hf in range(2):
                E(f"ds_read_b64_tr_b16 {v(VF[n % NVF] + 2*hf, 2)}, {v(ad[d])} offset:{ks*4096 + hf*2048}")
        def send(d, t):
            a = OA(d, t)
            for r in (a, a+2): E(f"v_pk_mul_f32 {v(r, 2)}, {v(r, 2)}, {v(FS[t], 2)} op_sel_hi:[1,0]")
            E(f"ds_write_b128 {v(vXw)}, {v(a, 4)} offset:{((d-2)*3+t)*1024}")
        for n in range(NVF): rd(n)
        for n, (d, ks) in enumerate(items):
            for t in range(3):
                acc = v(OA(d, t), 4)
                E(f"{MF} {acc}, {v(VF[n % NVF], 4)}, {v(S(2*(half*4+ks), t), 4)}, {acc if (half or ks) else 0}")
            if n + NVF < 16: rd(n + NVF)
            if q and n == cfg.b1v - 1: E.barrier(f"1_{8+q}")
        if half:
            for d in (2, 3):
                for t in range(3): send(d, t)
            E.wait_lgkm(0)
        if q: E.barrier(f"2_{8+q}")
        if half:
            for i in range(6): E(f"ds_read_b128 {v(PT(i), 4)}, {v(vXr)} offset:{i*1024}")
            for d in range(2):
                for t in range(3):
                    a, b = OA(d, t), PT(d*3+t)
                    for r in (0, 2): E(f"v_pk_fma_f32 {v(a+r, 2)}, {v(a+r, 2)}, {v(FS[t], 2)}, {v(b+r, 2)} op_sel_hi:[1,0,1]")
                    o = OA(0, t) + 2*d
                    E(f"v_cvt_pk_bf16_f32 {v(o)}, {v(a)}, {v(a+1)}\nv_cvt_pk_bf16_f32 {v(o+1)}, {v(a+2)}, {v(a+3)}")
                    if d: E(f"ds_write_b128 {v(vXr)}, {v(OA(0, t), 4)} offset:{t*1024}")
            E.wait_lgkm(0)
            E.barrier(f"3_{8+q}")
    for q in range(8):
        if q == 0: E.wait('P', "Wl8")
        else: E.barrier(f"4_{7+q}")
        pv(q)
        if q == 0:
            E.wait('A', "St")
            for t in range(3): E(f"ds_read_b64 {v(PT(t), 2)}, {v(vSt)} offset:{t*128}")
            for t in range(3):
                pm, pl, mx, eo = PT(t), PT(t)+1, PT(t)+2, PT(t)+3
                E(f"v_max_f32 {v(mx)}, {v(pm)}, {v(NM[t])}")
                E(f"v_sub_f32 {v(eo)}, {v(NM[t])}, {v(mx)}\nv_sub_f32 {v(pm)}, {v(pm)}, {v(mx)}")
                E(f"v_exp_f32 {v(eo)}, {v(eo)}\nv_exp_f32 {v(pm)}, {v(pm)}")
                E(f"v_mul_f32 {v(mx)}, {v(eo)}, {v(NM[t]+1)}\nv_fmac_f32 {v(mx)}, {v(pm)}, {v(pl)}")
                E(f"v_rcp_f32 {v(mx)}, {v(mx)}")
                E(f"v_mul_f32 {v(FS[t])}, {v(eo)}, {v(mx)}")
    final_store(E, cfg, vLane, vA, vB2, S0)
    dump_stamps(E, cfg, vLane, vA)
    E("s_endpgm")
    return E

HEADER = open("cdna_kernels/" + NAME + ".s.ref").read().split("; Override launch")[0] if __name__ == "__main__" or True else ""

def kd(name, vg, sg):
    return f""".p2align 6
.amdhsa_kernel {name}
  .amdhsa_next_free_vgpr {vg}
  .amdhsa_next_free_sgpr {sg}
  .amdhsa_accum_offset {(vg + 3) // 4 * 4}
  .amdhsa_group_segment_fixed_size 0
  .amdhsa_kernarg_size 64
  .amdhsa_user_sgpr_count 2
  .amdhsa_user_sgpr_kernarg_segment_ptr 1
  .amdhsa_system_sgpr_workgroup_id_x 1
  .amdhsa_float_denorm_mode_32 3
.end_amdhsa_kernel
"""

def gen_reduce():
    E = Stream()
    E("s_cmp_ge_u32 s2, 336\ns_cbranch_scc1 L_rend")
    E("s_load_dwordx2 s[4:5], s[0:1], 40\ns_load_dwordx2 s[6:7], s[0:1], 56")
    E("v_lshl_add_u32 v1, s2, 8, v0")
    E(f"s_mov_b32 s16, {-(-(1 << 32) // 2688)}\nv_mul_hi_u32 v2, v1, s16")
    E(f"s_mov_b32 s17, {7*43008}\nv_mul_lo_u32 v2, v2, s17")
    E("v_lshlrev_b32 v1, 4, v1\nv_add_u32 v2, v2, v1")
    E("s_waitcnt lgkmcnt(0)")
    E(f"s_mov_b32 s8, s4\ns_and_b32 s9, s5, 0xffff\ns_mov_b32 s10, {32*43008}\ns_mov_b32 s11, 0x20000")
    E(f"s_mov_b32 s12, s6\ns_and_b32 s13, s7, 0xffff\ns_mov_b32 s14, {256*43008}\ns_mov_b32 s15, 0x20000")
    for h in range(8):
        E(f"s_mov_b32 s16, {h*43008}\nbuffer_load_dwordx4 {v(8+4*h, 4)}, v2, s[12:15], s16 offen")
    for h in range(8):
        for i in range(4):
            r = 8 + 4*h + i
            if h == 0: E(f"v_lshlrev_b32 {v(40+2*i)}, 16, {v(r)}\nv_and_b32 {v(41+2*i)}, 0xffff0000, {v(r)}")
            else:
                E(f"v_lshlrev_b32 v3, 16, {v(r)}\nv_and_b32 v4, 0xffff0000, {v(r)}")
                E(f"v_add_f32 {v(40+2*i)}, {v(40+2*i)}, v3\nv_add_f32 {v(41+2*i)}, {v(41+2*i)}, v4")
    for i in range(4): E(f"v_cvt_pk_bf16_f32 {v(48+i)}, {v(40+2*i)}, {v(41+2*i)}")
    E("buffer_store_dwordx4 v[48:51], v1, s[8:11], 0 offen")
    E.label("L_rend"); E("s_endpgm")
    return E

def gen(cfg):
    ids = {}
    for _ in range(2):
        P = gen_proj(cfg, ids); A = gen_attn(cfg, ids)
    check_deadlock(P, A, ids)
    H = Stream()
    H("s_cmp_ge_u32 s2, 256\ns_cbranch_scc0 L_go")
    H.label("L_end"); H("s_endpgm"); H.label("L_go")
    if cfg.echo: H("s_memrealtime s[70:71]")
    H("s_load_dwordx16 s[4:19], s[0:1], 0")
    H(f"v_lshrrev_b32 v1, 6, v0\ns_lshr_b32 {s(sB)}, s2, 3\ns_and_b32 {s(sH)}, s2, 7\nv_readfirstlane_b32 {s(sW)}, v1")
    H(f"s_mov_b32 {s(sSpin)}, 0x100000")
    if cfg.stamps:
        H(f"v_mov_b32 v11, 0\ns_memrealtime {s(sSt, 2)}\ns_waitcnt lgkmcnt(0)\nv_writelane_b32 v11, {s(sSt)}, 62")
        H(f"s_memtime {s(sSt, 2)}\ns_waitcnt lgkmcnt(0)\nv_writelane_b32 v11, {s(sSt)}, 61")
    H(f"s_lshl_b32 {s(sT0)}, s2, 18")
    H(f"s_mul_i32 {s(sT1)}, {s(sB)}, 43008\ns_lshl_b32 {s(sT2)}, {s(sH)}, 10\ns_mul_i32 {s(sT3)}, {s(sH)}, 458752")
    for d in (sX, sK, sV, sWq, sWo, sWs): H(f"s_mov_b32 {s(d+3)}, 0x20000")
    H(f"s_mov_b32 {s(sX+2)}, 43008\ns_mov_b32 {s(sK+2)}, 262144\ns_mov_b32 {s(sV+2)}, 262144")
    H(f"s_sub_u32 {s(sWq+2)}, 3670016, {s(sT2)}\ns_mov_b32 {s(sWo+2)}, 458752\ns_mov_b32 {s(sWs+2)}, {8*43008}")
    H(f"s_mul_i32 {s(sOff)}, {s(sB)}, {8*43008}\ns_mov_b32 {s(sHk)}, {s(sH)}")
    H("s_waitcnt lgkmcnt(0)")
    for d, src, off in ((sK, 6, sT0), (sX, 4, sT1), (sWq, 10, sT2), (sV, 8, sT0), (sWo, 12, sT3), (sWs, 18, sOff)):
        H(f"s_add_u32 {s(d)}, {s(src)}, {s(off)}\ns_addc_u32 {s(d+1)}, {s(src+1)}, 0\ns_and_b32 {s(d+1)}, {s(d+1)}, 0xffff")
    if cfg.fused == 1:
        H(f"s_mov_b32 {s(sDbg)}, s16\ns_and_b32 {s(sDbg+1)}, s17, 0xffff\ns_mov_b32 {s(sDbg+2)}, 256\ns_mov_b32 {s(sDbg+3)}, 0x20000")
    if cfg.fused == 2:
        H(f"s_lshl_b32 {s(sOff)}, {s(sB)}, 11\ns_add_u32 {s(sOff)}, {s(sOff)}, {IB_OFF}")
        H(f"s_add_u32 {s(sDbg)}, s18, {s(sOff)}\ns_addc_u32 {s(sDbg+1)}, s19, 0\ns_and_b32 {s(sDbg+1)}, {s(sDbg+1)}, 0xffff\ns_mov_b32 {s(sDbg+2)}, 2048\ns_mov_b32 {s(sDbg+3)}, 0x20000")
    H(f"s_cmp_lt_u32 {s(sW)}, 4\ns_cbranch_scc1 L_attn")
    out = [HEADER.rstrip()]
    if cfg.fused: out.append("; @launch grid=(256,1,1) block=(512,1,1) lds=163840")
    else:
        out.append(f"; @launch kernel={NAME}_kernel grid=(256,1,1) block=(512,1,1) lds=163840")
        out.append(f"; @launch kernel=gqa_reduce_kernel grid=(336,1,1) block=(256,1,1) lds=0")
    out.append('.amdgcn_target "amdgcn-amd-amdhsa--gfx950"\n.text')
    out.append(f".globl {NAME}_kernel\n.p2align 8\n.type {NAME}_kernel,@function\n{NAME}_kernel:")
    out += [H.text(), P.text(), ".p2align 6\nL_attn:", A.text()]
    if not cfg.fused:
        out.append(".globl gqa_reduce_kernel\n.p2align 8\n.type gqa_reduce_kernel,@function\ngqa_reduce_kernel:")
        out.append(gen_reduce().text())
    out.append('.section .rodata,"a"')
    out.append(kd(NAME + "_kernel", 256, 102))
    if not cfg.fused: out.append(kd("gqa_reduce_kernel", 56, 32))
    return "\n".join(out), P.stn, A.stn

if __name__ == "__main__":
    kw = eval("dict(" + (sys.argv[2] if len(sys.argv) > 2 else "") + ")")
    txt, _, _ = gen(Cfg(**kw))
    open(sys.argv[1], "w").write(txt)
```

```python
import sys, math, struct
from asmlib import Stream, v, s
NAME = "standalone__gqa_block_cached__near_ridge"
STAMP_OFF = 0x8000000

SLOT = [0, 32768, 65536]
WB = 98304
QB = 155648
FL = 161792
ST = 161856
XS = 32768
XR = SLOT[1]
TB = SLOT[2]
TP = 912
def kslot(p): return SLOT[p % 3]
def vslot(p): return SLOT[2] if p % 2 == 0 else SLOT[0]

sX, sK, sV, sWq, sWo, sWs, sOut, sDbg = 20, 24, 28, 32, 36, 40, 44, 48
sW, sJ, sOff, sB, sH, sSpin, sC, sT0, sT1, sSt = 52, 53, 54, 55, 56, 57, 58, 60, 61, 62
sT2, sT3 = 64, 65
sHk = 3
IB_OFF = 0x1000000
MF = "v_mfma_f32_16x16x32_bf16"

class Cfg:
    kvpol = "nt"; wpol = ""; xpol = ""; stamps = False; fused = 2
    pre = 4
    b2q = 2
    b1o = 9; b1e = 5; b2e = 11
    g0 = 4
    g1 = None; kpre = 2; gwe = 14; vblock = False
    gw = 8
    kthr = 4
    b17 = 12
    b48 = 16
    rt = False; psleep = 2; pdelay = False
    fine = None; echo = None
    prio = 0; prio_tr = 1; prio_v = 0; stpol = 'sc1'; outpol = ''
    pf_w = True; pf_code = False
    progflag = 2; rot = True; fsh = 4; win = None; rdy = 2; ppol = 'sc1'; fpol = 'sc1'
    def __init__(self, **k):
        for a, b in k.items():
            assert hasattr(self, a), a
            setattr(self, a, b)

class Role(Stream):
    def __init__(self, cls, ids, cfg, vFlag, vPoll, vT, vStamp):
        super().__init__()
        self.cls, self.ids, self.cfg = cls, ids, cfg
        self.vFlag, self.vPoll, self.vT, self.vStamp = vFlag, vPoll, vT, vStamp
        self.n = 0; self.ev = []; self.nl = 0; self.stn = []; self.ast = []
    def signal(self, name):
        self.n += 1
        self.ids[(self.cls, name)] = self.n
        self.ev.append(('sig', name))
        if self.cfg.fine and "sig" + name in self.cfg.fine: self.astamp("sig" + name)
        self(f"v_mov_b32 {v(self.vT)}, {self.n}")
        self(f"ds_write_b32 {v(self.vFlag)}, {v(self.vT)}")
    def wait(self, cls, name, stamp=None):
        idn = self.ids.get((cls, name), 0)
        self.ev.append(('wait', cls, name))
        self.nl += 1
        lab = f"Lw{self.cls}{self.nl}"
        self.label(lab)
        self(f"ds_read_b32 {v(self.vT)}, {v(self.vPoll)} offset:{0 if cls == 'P' else 16}")
        self(f"s_sub_u32 {s(sSpin)}, {s(sSpin)}, 1")
        self("s_cbranch_scc1 L_end")
        self("s_waitcnt lgkmcnt(0)")
        self(f"v_cmp_gt_u32 vcc, {idn}, {v(self.vT)}")
        self(f"s_cbranch_vccnz {lab}")
        if self.cfg.fine:
            if f"{cls}:{name}" in self.cfg.fine: self.astamp(f"{cls}:{name}"); self.flush_ast()
        else: self.stamp(stamp or f"{cls}:{name}")
    def wait2(self, nameP, nameA, vT2):
        self.ev.append(('wait', 'P', nameP)); self.ev.append(('wait', 'A', nameA))
        self.nl += 1
        lab = f"Lw{self.cls}{self.nl}"
        self.label(lab)
        self(f"ds_read_b32 {v(self.vT)}, {v(self.vPoll)}")
        self(f"ds_read_b32 {v(vT2)}, {v(self.vPoll)} offset:16")
        self(f"s_sub_u32 {s(sSpin)}, {s(sSpin)}, 1")
        self("s_cbranch_scc1 L_end")
        self("s_waitcnt lgkmcnt(0)")
        self(f"v_cmp_gt_u32 vcc, {self.ids.get(('P', nameP), 0)}, {v(self.vT)}")
        self(f"s_cbranch_vccnz {lab}")
        self(f"v_cmp_gt_u32 vcc, {self.ids.get(('A', nameA), 0)}, {v(vT2)}")
        self(f"s_cbranch_vccnz {lab}")
        if self.cfg.fine:
            if f"P:{nameP}" in self.cfg.fine: self.astamp(f"P:{nameP}"); self.flush_ast()
        else: self.stamp(f"P:{nameP}")
    def barrier(self, name):
        self.ev.append(('bar', name))
        self("s_barrier")
        if not self.cfg.fine: self.stamp("B:" + name)
        elif "B:" + name in self.cfg.fine: self.astamp("B:" + name); self.flush_ast()
    def stamp(self, name):
        if self.cfg.echo and self.cls == 'P' and name in self.cfg.echo[:2]:
            self(f"s_waitcnt lgkmcnt(0)\ns_memrealtime {s(70 + 2*self.cfg.echo.index(name), 2)}\ns_waitcnt lgkmcnt(0)")
        if not self.cfg.stamps or len(self.stn) >= 61 or (self.cfg.stamps == 'min' and name not in ('start', 'end', 'B:x', 'B:1_1', 'B:1_7', 'B:4_8', 'B:4_14', 'B:3_15', 'stored', 'flags')): return
        self("s_waitcnt lgkmcnt(0)")
        self(f"{'s_memrealtime' if self.cfg.rt and name != 'end' else 's_memtime'} {s(sSt, 2)}")
        self("s_waitcnt lgkmcnt(0)")
        self(f"v_writelane_b32 {v(self.vStamp)}, {s(sSt)}, {len(self.stn)}")
        self.stn.append(name)
    def dma(self, voff, srd, soff, lds, pol, tag, sbase=sJ):
        self(f"s_add_u32 m0, {s(sbase)}, {lds}")
        self(f"s_mov_b32 {s(sOff)}, {soff}")
        self(f"buffer_load_dwordx4 {v(voff)}, {s(srd, 4)}, {s(sOff)} offen {pol} lds", tag)
        if self.cfg.fine and tag in self.cfg.fine: self.astamp(tag)
    def astamp(self, name):
        if len(self.ast) < 18:
            self(f"s_memtime {s(66 + 2*len(self.ast), 2)}"); self.ast.append(name)
    def flush_ast(self):
        if not self.ast: return
        self("s_waitcnt lgkmcnt(0)")
        for i, n in enumerate(self.ast):
            if len(self.stn) < 60:
                self(f"v_writelane_b32 {v(self.vStamp)}, {s(66 + 2*i)}, {len(self.stn)}"); self.stn.append(n)
        self.ast = []

def check_deadlock(P, A, ids):
    pos = {'P': 0, 'A': 0}; cnt = {'P': 0, 'A': 0}; ev = {'P': P.ev, 'A': A.ev}
    while True:
        prog = False
        for c in 'PA':
            while pos[c] < len(ev[c]):
                e = ev[c][pos[c]]
                if e[0] == 'sig': cnt[c] += 1
                elif e[0] == 'bar':
                    o = 'A' if c == 'P' else 'P'
                    if pos[o] < len(ev[o]) and ev[o][pos[o]] == e: pos[o] += 1
                    else: break
                else:
                    assert (e[1], e[2]) in ids, e
                    if cnt[e[1]] < ids[(e[1], e[2])]: break
                pos[c] += 1; prog = True
        if all(pos[c] == len(ev[c]) for c in 'PA'): return
        assert prog, ("deadlock", ev['P'][pos['P']:pos['P']+1], ev['A'][pos['A']:pos['A']+1])

def common_lane(E, vLane, vSw):
    E(f"v_and_b32 {v(vLane)}, 63, v0")
    E(f"v_lshrrev_b32 {v(vSw)}, 3, {v(vLane)}")
    E(f"v_and_b32 {v(vSw)}, 6, {v(vSw)}")
    E(f"v_xor_b32 {v(vSw)}, {v(vSw)}, {v(vLane)}")
    E(f"v_and_b32 {v(vSw)}, 7, {v(vSw)}")
    E(f"v_lshlrev_b32 {v(vSw)}, 4, {v(vSw)}")

def tr_base(E, dst, vLane, t1, t2, gmul):
    E(f"v_lshrrev_b32 {v(t1)}, 5, {v(vLane)}")
    E(f"v_mul_u32_u24 {v(dst)}, {gmul}, {v(t1)}")
    E(f"v_bfe_u32 {v(t1)}, {v(vLane)}, 2, 3")
    E(f"v_lshl_add_u32 {v(dst)}, {v(t1)}, 7, {v(dst)}")
    E(f"v_bfe_u32 {v(t1)}, {v(vLane)}, 3, 2")
    E(f"v_lshl_add_u32 {v(dst)}, {v(t1)}, 5, {v(dst)}")
    E(f"v_and_b32 {v(t1)}, 3, {v(vLane)}")
    E(f"v_lshl_add_u32 {v(dst)}, {v(t1)}, 3, {v(dst)}")

def b128_base(E, dst, vLane, t1, t2):
    E(f"v_and_b32 {v(t1)}, 15, {v(vLane)}")
    E(f"v_lshlrev_b32 {v(dst)}, 7, {v(t1)}")
    E(f"v_and_b32 {v(t1)}, 6, {v(vLane)}")
    E(f"v_lshrrev_b32 {v(t2)}, 4, {v(vLane)}")
    E(f"v_xor_b32 {v(t1)}, {v(t1)}, {v(t2)}")
    E(f"v_lshl_add_u32 {v(dst)}, {v(t1)}, 4, {v(dst)}")

def dump_stamps(E, cfg, vLane, t):
    if cfg.echo and E.cls == 'P':
        E(f"s_cmp_lg_u32 {s(sW)}, 4\ns_cbranch_scc1 L_end")
        E.wait_vm(0, force=True)
        E.stamp("end")
        E(f"s_sub_u32 s70, s72, s70\ns_mul_i32 s70, s70, {cfg.echo[2]}\ns_min_u32 s70, s70, 100000\ns_memrealtime s[72:73]\ns_waitcnt lgkmcnt(0)")
        E("L_echo:\ns_memrealtime s[74:75]\ns_waitcnt lgkmcnt(0)\ns_sub_u32 s74, s74, s72\ns_cmp_lt_u32 s74, s70\ns_cbranch_scc1 L_echo")
    if not cfg.stamps: return
    E.wait_vm(0, force=True)
    E.stamp("end")
    E(f"s_memrealtime {s(sSt, 2)}\ns_waitcnt lgkmcnt(0)\nv_writelane_b32 {v(E.vStamp)}, {s(sSt)}, 63")
    E(f"s_lshl_b32 {s(sT0)}, s2, 3\ns_add_u32 {s(sT0)}, {s(sT0)}, {s(sW)}\ns_lshl_b32 {s(sT0)}, {s(sT0)}, 8")
    E(f"s_add_u32 {s(sOut)}, s18, {STAMP_OFF}\ns_addc_u32 {s(sOut+1)}, s19, 0\ns_and_b32 {s(sOut+1)}, {s(sOut+1)}, 0xffff")
    E(f"s_mov_b32 {s(sOut+2)}, {256*8*256}\ns_mov_b32 {s(sOut+3)}, 0x20000")
    E(f"v_lshlrev_b32 {v(t)}, 2, {v(vLane)}")
    E(f"buffer_store_dword {v(E.vStamp)}, {v(t)}, {s(sOut, 4)}, {s(sT0)} offen")

SLAB = 1536
def interleave(dmas, groups, pre, hooks={}):
    nd = 0
    def one():
        nonlocal nd
        dmas[nd](); nd += 1
        if nd in hooks: hooks[nd]()
    pre = min(pre, len(dmas))
    while nd < pre: one()
    rest = len(dmas) - nd
    for k, g in enumerate(groups):
        g()
        while nd < pre + (k + 1) * rest // len(groups): one()
    while nd < len(dmas): one()

def gen_proj(cfg, ids):
    vLane, vSw, vKV, vWq, vWo, vWRd, vQwr, vFlag, vPoll, vT, vStamp, vA, vB2 = 1, 2, 3, 4, 5, 6, 7, 8, 9, 10, 11, 12, 13
    vOr, vSt = vWq, vQwr
    XF = 16; WA = 184; QA = 240
    OUT = 16; WBs = 128
    OF = [100 + 4*i for i in range(6)]; OF2 = [240, 244, 248, 252, 124, 12]
    E = Role('P', ids, cfg, vFlag, vPoll, vT, vStamp)
    if cfg.prio: E(f"s_setprio {cfg.prio}")
    E(f"s_sub_u32 {s(sT0)}, {s(sW)}, 4")
    E(f"s_lshl_b32 {s(sJ)}, {s(sT0)}, 10")
    common_lane(E, vLane, vSw)
    E(f"v_lshrrev_b32 {v(vA)}, 3, {v(vLane)}")
    E(f"v_lshl_add_u32 {v(vKV)}, {v(vA)}, 9, {v(vSw)}")
    E(f"s_lshl_b32 {s(sT1)}, {s(sT0)}, 12")
    E(f"v_add_u32 {v(vKV)}, {s(sT1)}, {v(vKV)}")
    def dK(p, i):
        if p < 8: E.dma(vKV, sK, ((p & 1) * 256 + 32 * i) * 512 + (p >> 1) * 128, kslot(p) + 4096 * i, cfg.kvpol, f"K{p}")
        else:
            q = p - 8
            E.dma(vKV, sV, ((q & 1) * 256 + 32 * i) * 512 + (q >> 1) * 128, vslot(q) + 4096 * i, cfg.kvpol, f"K{p}")
    def dW(p, i):
        if p < 8: E.dma(vWq, sWq, 32 * i * 8192 + (p & 1) * 512 + (p >> 1) * 128, WB + 4096 * i, cfg.wpol, f"W{p}")
        else:
            q = p - 8
            E.dma(vWo, sWo, ((q & 1) * 256 + 64 * (q >> 1) + 32 * (i // 7)) * 896 + (i % 7) * 128, WB + 4096 * i, cfg.wpol, f"W{p}")
    def LK(p): return [lambda i=i: dK(p, i) for i in range(8)]
    def LW(p): return [lambda i=i: dW(p, i) for i in range(14)]
    def run(l):
        for d in l: d()
    E(f"v_and_b32 {v(vB2)}, 4, {v(vA)}")
    E(f"v_add_u32 {v(vB2)}, {v(vB2)}, {v(vA)}")
    E(f"s_lshr_b32 {s(sT1)}, {s(sT0)}, 1\ns_lshl_b32 {s(sT1)}, {s(sT1)}, 4")
    E(f"s_and_b32 {s(sT2)}, {s(sT0)}, 1\ns_lshl_b32 {s(sT2)}, {s(sT2)}, 2\ns_add_u32 {s(sT1)}, {s(sT1)}, {s(sT2)}")
    E(f"v_add_u32 {v(vB2)}, {s(sT1)}, {v(vB2)}")
    E(f"v_lshl_add_u32 {v(vWq)}, {v(vB2)}, 13, {v(vSw)}")
    E(f"s_lshl_b32 {s(sT1)}, {s(sT0)}, 3\nv_add_u32 {v(vB2)}, {s(sT1)}, {v(vA)}")
    E(f"v_mul_u32_u24 {v(vWo)}, 896, {v(vB2)}\nv_add_u32 {v(vWo)}, {v(vWo)}, {v(vSw)}")
    E(f"s_lshl_b32 {s(sT1)}, {s(sT0)}, 2\ns_add_u32 {s(sT1)}, {s(sT1)}, {FL}")
    E(f"v_mov_b32 {v(vFlag)}, {s(sT1)}\nv_mov_b32 {v(vT)}, 0\nds_write_b32 {v(vFlag)}, {v(vT)}")
    E(f"v_and_b32 {v(vPoll)}, 3, {v(vLane)}\nv_lshlrev_b32 {v(vPoll)}, 2, {v(vPoll)}\nv_add_u32 {v(vPoll)}, {FL}, {v(vPoll)}")
    tr_base(E, vWRd, vLane, vA, vB2, 2048)
    E(f"s_lshl_b32 {s(sT1)}, {s(sT0)}, 5\nv_xor_b32 {v(vWRd)}, {s(sT1)}, {v(vWRd)}\nv_add_u32 {v(vWRd)}, {WB}, {v(vWRd)}")
    E(f"v_and_b32 {v(vA)}, 15, {v(vLane)}\nv_lshlrev_b32 {v(vQwr)}, 4, {v(vA)}")
    E(f"v_lshrrev_b32 {v(vA)}, 5, {v(vLane)}\nv_lshl_add_u32 {v(vQwr)}, {v(vA)}, 8, {v(vQwr)}")
    E(f"v_bfe_u32 {v(vA)}, {v(vLane)}, 4, 1\nv_lshl_add_u32 {v(vQwr)}, {v(vA)}, 3, {v(vQwr)}")
    E(f"s_lshr_b32 {s(sT1)}, {s(sT0)}, 1\ns_mul_i32 {s(sT1)}, {s(sT1)}, 3072")
    E(f"s_and_b32 {s(sT2)}, {s(sT0)}, 1\ns_lshl_b32 {s(sT2)}, {s(sT2)}, 9\ns_add_u32 {s(sT1)}, {s(sT1)}, {s(sT2)}\ns_add_u32 {s(sT1)}, {s(sT1)}, {QB}")
    E(f"v_add_u32 {v(vQwr)}, {s(sT1)}, {v(vQwr)}")
    b128_base(E, vA, vLane, vB2, vT)
    E(f"v_add_u32 {v(vA)}, {XS}, {v(vA)}\nv_xor_b32 {v(vB2)}, 64, {v(vA)}")
    E.wait_lgkm(0)
    E.barrier("i"); E.stamp("start")
    run(LW(0))
    E.barrier("x")
    def xrd(ks):
        for t in range(3):
            E(f"ds_read_b128 {v(XF + (ks*3+t)*4, 4)}, {v(vB2 if ks & 1 else vA)} offset:{(ks >> 1)*6144 + t*2048}")
    interleave(LK(0), [lambda k=k: xrd(k) for k in range(14)], 0)
    def qwrite():
        for t in range(3):
            E(f"v_cvt_pk_bf16_f32 {v(QA+4*t)}, {v(QA+4*t)}, {v(QA+4*t+1)}")
            E(f"v_cvt_pk_bf16_f32 {v(QA+4*t+1)}, {v(QA+4*t+2)}, {v(QA+4*t+3)}")
            E(f"ds_write_b64 {v(vQwr)}, {v(QA+4*t, 2)} offset:{t*1024}")
    for p in range(8):
        E.wait_tag(f"W{p}")
        if p: E.wait_lgkm(0)
        E.barrier(f"1_{p}")
        for i in range(14):
            for hf in range(2):
                E(f"ds_read_b64_tr_b16 {v(WA + 4*i + 2*hf, 2)}, {v(vWRd)} offset:{i*4096 + hf*1024}")
        def grp(i):
            for t in range(3):
                E(f"{MF} {v(QA+4*t, 4)}, {v(WA+4*i, 4)}, {v(XF+(i*3+t)*4, 4)}, {v(QA+4*t, 4) if i else 0}")
        for i in range(cfg.g0): grp(i)
        E.wait_lgkm(0)
        E.barrier(f"2_{p}")
        groups = [lambda i=i: grp(i) for i in range(cfg.g0, 14)]
        if p < 7:
            if cfg.g1 is None:
                interleave(LW(p + 1), groups, cfg.pre); rest = []
            else:
                run(LW(p + 1)[:cfg.pre]); run(groups[:cfg.g1]); run(LW(p + 1)[cfg.pre:]); rest = groups[cfg.g1:]
            E.barrier(f"4_{p}")
            interleave(LK(p + 1), rest, cfg.kpre)
            qwrite()
        else:
            interleave(LK(8)[:4], groups, 0)
            qwrite(); E.wait_lgkm(0)
            E.barrier("3_7")
            run(LK(8)[4:])
    tr_base(E, vWRd, vLane, vA, vB2, 1024)
    E(f"s_lshr_b32 {s(sT1)}, {s(sJ)}, 5\nv_xor_b32 {v(vWRd)}, {s(sT1)}, {v(vWRd)}\nv_add_u32 {v(vWRd)}, {WB}, {v(vWRd)}")
    E(f"v_lshlrev_b32 {v(vSt)}, 4, {v(vLane)}\nv_add_u32 {v(vOr)}, {XR}, {v(vSt)}")
    E(f"s_lshl_b32 {s(sT0)}, {s(sHk)}, 2\ns_add_u32 {s(sT0)}, {s(sT0)}, {s(sW)}\ns_sub_u32 {s(sT0)}, {s(sT0)}, 4\ns_mul_i32 {s(sT0)}, {s(sT0)}, {SLAB}")
    E(f"v_lshl_add_u32 {v(vSw)}, {v(vLane)}, 3, {s(sT0)}\nv_add_u32 {v(vSt)}, {s(sT0)}, {v(vSt)}")
    E.wait_tag("K7")
    if cfg.prio_tr != cfg.prio: E(f"s_setprio {cfg.prio_tr}")
    E.barrier("5_7")
    run(LW(8))
    E.wait_vm(cfg.kthr)
    run(LK(9))
    def wset(q): return WA if q % 2 == 0 else WBs
    def read_of(q, dst):
        for ks in range(2):
            for t in range(3):
                E(f"ds_read_b128 {v(dst[ks*3+t], 4)}, {v(vOr)} offset:{((q & 1)*2 + (ks ^ 1))*6144 + t*1024}")
    def ogrp(q, of, i, ks):
        for t in range(3):
            acc = v(OUT + (i*3+t)*4, 4)
            E(f"{MF} {acc}, {v(wset(q) + (ks*7+i)*4, 4)}, {v(of[ks*3+t], 4)}, {acc if (q or ks) else 0}")
    for q in range(8):
        p = 8 + q
        E.wait_tag(f"W{p}")
        if q == 0:
            E.signal(f"Wl{p}"); E.wait('P', f"Wl{p}")
        else: E.barrier(f"1_{p}")
        if q and not q & 1: read_of(q - 1, OF)
        for i in range(7):
            for ks in range(2):
                for hf in range(2):
                    E(f"ds_read_b64_tr_b16 {v(wset(q) + (ks*7+i)*4 + 2*hf, 2)}, {v(vWRd)} offset:{ks*28672 + i*4096 + hf*2048}")
        if q == 0:
            E.signal(f"Wr{p}"); E.wait('P', f"Wr{p}")
            if cfg.prio_tr != cfg.prio_v: E(f"s_setprio {cfg.prio_v}")
        else:
            E.wait_lgkm(0); E.barrier(f"2_{p}")
        if q == 7: break
        groups = [lambda i=i, ks=ks: ogrp(q - 1, OF, i, ks) for i in range(7) for ks in range(2)] if q else []
        def geto():
            E.barrier(f"3_{p}"); read_of(q - 1, OF)
        gw = cfg.gw if q & 1 else cfg.gwe
        if q == 6: gw = 14
        if cfg.vblock and not q & 1:
            run(LW(p + 1)[:cfg.pre]); run(groups[:gw]); run(LW(p + 1)[cfg.pre:])
        else:
            interleave(LW(p + 1), groups[:gw], cfg.pre + (2 if q & 1 else 0), {cfg.pre: geto} if q & 1 else {})
        E.wait_tag(f"K{p+1}")
        E.barrier(f"4_{p}")
        interleave(LK(p + 2) if q < 6 else [], groups[gw:], cfg.kpre)
    E(f"s_lshr_b32 {s(sT0)}, {s(sJ)}, 7\ns_add_u32 {s(sT0)}, {s(sT0)}, {s(sHk)}\ns_lshl_b32 {s(sT0)}, {s(sT0)}, {cfg.fsh}")
    E(f"v_lshl_add_u32 {v(vKV)}, {v(vLane)}, {5 + cfg.fsh}, {s(sT0)}\nv_mov_b32 {v(vWo)}, 1")
    E.barrier("3_15"); read_of(6, OF); read_of(7, OF2)
    def flag(lo, hi):
        E.wait_tag(f"S{hi-1}")
        E(f"s_mov_b64 exec, {(1 << hi) - (1 << lo)}")
        E(f"buffer_store_dword {v(vWo)}, {v(vKV)}, {s(sDbg, 4)}, 0 offen {cfg.fpol}")
        E("s_mov_b64 exec, -1")
    def put(i):
        a, b, c = OUT + i*12, OUT + i*12 + 4, OUT + i*12 + 8
        E(f"v_cvt_pk_bf16_f32 {v(a)}, {v(a)}, {v(a+1)}\nv_cvt_pk_bf16_f32 {v(a+1)}, {v(a+2)}, {v(a+3)}")
        E(f"v_cvt_pk_bf16_f32 {v(a+2)}, {v(b)}, {v(b+1)}\nv_cvt_pk_bf16_f32 {v(a+3)}, {v(b+2)}, {v(b+3)}")
        if cfg.win and i >= cfg.win: flag(i - cfg.win, i - cfg.win + 1)
        E(f"s_mov_b32 {s(sOff)}, {i*32*SLAB}")
        E(f"buffer_store_dwordx4 {v(a, 4)}, {v(vSt)}, {s(sWs, 4)}, {s(sOff)} offen {cfg.stpol}", f"S{i}")
        E(f"v_cvt_pk_bf16_f32 {v(c)}, {v(c)}, {v(c+1)}\nv_cvt_pk_bf16_f32 {v(c+1)}, {v(c+2)}, {v(c+3)}")
        E(f"buffer_store_dwordx2 {v(c, 2)}, {v(vSw)}, {s(sWs, 4)}, {s(sOff)} offen offset:1024 {cfg.stpol}", f"S{i}")
    for i in range(7):
        ogrp(6, OF, i, 0); ogrp(6, OF, i, 1)
        ogrp(7, OF2, i, 0)
        if i: put(i - 1)
        ogrp(7, OF2, i, 1)
    put(6)
    if cfg.pdelay == 1: E.barrier("D")
    steps = {0: [(0, 7)], 1: [(0, 3), (3, 5), (5, 6), (6, 7)], 2: [(i, i + 1) for i in range(7)]}[int(cfg.progflag)]
    for lo, hi in steps:
        if not cfg.win or lo >= 7 - cfg.win: flag(lo, hi)
    if cfg.pdelay == 2: E.barrier("D")
    E.stamp("stored")
    dump_stamps(E, cfg, vLane, vKV)
    E("s_endpgm")
    return E

def gen_attn(cfg, ids):
    vLane, vSw, vK0, vK1, vK2, vK3, vQr, vFlag, vPoll, vT, vStamp, vA, vB2 = 1, 2, 3, 4, 5, 6, 7, 8, 9, 10, 11, 12, 13
    vM = 14; vPf = 0
    S0 = 16; QF = 208; KF = 232; NKF = 6
    def S(T, t, r=0): return S0 + (T*3 + t)*4 + r
    E = Role('A', ids, cfg, vFlag, vPoll, vT, vStamp)
    common_lane(E, vLane, vSw)
    E(f"v_lshrrev_b32 {v(vA)}, 3, {v(vLane)}")
    if cfg.pf_w:
        E(f"s_mul_i32 {s(sT0)}, {s(sB)}, 14\ns_lshl_b32 {s(sT1)}, {s(sW)}, 2\ns_add_u32 {s(sT0)}, {s(sT0)}, {s(sT1)}\ns_lshl_b32 {s(sT0)}, {s(sT0)}, 13")
        E(f"v_and_b32 {v(vB2)}, 7, {v(vLane)}\nv_lshlrev_b32 {v(vB2)}, 7, {v(vB2)}\nv_lshl_add_u32 {v(vB2)}, {v(vA)}, 13, {v(vB2)}")
        E(f"s_cmp_eq_u32 {s(sW)}, 3\ns_cselect_b32 exec_lo, 0xffff, -1\ns_mov_b32 exec_hi, 0")
        E(f"buffer_load_dword {v(vM)}, {v(vB2)}, {s(sWq, 4)}, {s(sT0)} offen")
        E("s_mov_b64 exec, -1")
    E(f"v_mul_u32_u24 {v(vK0)}, 896, {v(vA)}\nv_add_u32 {v(vK0)}, {v(vK0)}, {v(vSw)}")
    E(f"s_mul_i32 {s(sT0)}, {s(sW)}, {8*896}\nv_add_u32 {v(vK1)}, {s(sT0)}, {v(vK0)}")
    E(f"s_lshl_b32 {s(sJ)}, {s(sW)}, 10")
    for jl in range(7): E.dma(vK1, sX, jl * 128, XS + jl * 6144, cfg.xpol, "x")
    E(f"s_lshr_b32 {s(sT0)}, {s(sW)}, 1\ns_add_u32 {s(sT0)}, {s(sT0)}, 4\ns_and_b32 {s(sT1)}, {s(sW)}, 1")
    E(f"s_lshl_b32 {s(sJ)}, {s(sT0)}, 10\ns_mul_i32 {s(sT2)}, {s(sT1)}, {3*6144}\ns_add_u32 {s(sJ)}, {s(sJ)}, {s(sT2)}")
    E(f"s_mul_i32 {s(sT0)}, {s(sT0)}, {8*896}\ns_mul_i32 {s(sT1)}, {s(sT1)}, 384\ns_add_u32 {s(sT0)}, {s(sT0)}, {s(sT1)}")
    E(f"v_add_u32 {v(vK1)}, {s(sT0)}, {v(vK0)}")
    for jl in range(4): E.dma(vK1, sX, jl * 128, XS + jl * 6144, cfg.xpol, "x")
    E.barrier("i"); E.stamp("start")
    if cfg.pf_code:
        E(f"s_getpc_b64 {s(sOut, 2)}\nL_pc:\ns_sub_u32 {s(sOut)}, {s(sOut)}, L_pc-{NAME}_kernel\ns_subb_u32 {s(sOut+1)}, {s(sOut+1)}, 0")
        E(f"s_and_b32 {s(sOut+1)}, {s(sOut+1)}, 0xffff\ns_mov_b32 {s(sOut+2)}, L_last-{NAME}_kernel\ns_mov_b32 {s(sOut+3)}, 0x20000")
        E(f"s_lshl_b32 {s(sT0)}, {s(sW)}, 5\ns_add_u32 {s(sT0)}, {s(sT0)}, {s(sB)}\ns_lshl_b32 {s(sT0)}, {s(sT0)}, 7\nv_lshlrev_b32 {v(vB2)}, 14, {v(vLane)}")
        E(f"s_mov_b64 exec, 15\nbuffer_load_dword {v(vM+1)}, {v(vB2)}, {s(sOut, 4)}, {s(sT0)} offen\ns_mov_b64 exec, -1")
    E(f"v_and_b32 {v(vPoll)}, 3, {v(vLane)}\nv_lshlrev_b32 {v(vPoll)}, 2, {v(vPoll)}\nv_add_u32 {v(vPoll)}, {FL}, {v(vPoll)}")
    b128_base(E, vK0, vLane, vA, vB2)
    E(f"s_and_b32 {s(sT0)}, {s(sW)}, 1\ns_lshl_b32 {s(sT0)}, {s(sT0)}, 14")
    E(f"v_add_u32 {v(vK0)}, {s(sT0)}, {v(vK0)}\nv_xor_b32 {v(vK1)}, 64, {v(vK0)}")
    E(f"v_add_u32 {v(vK2)}, 0x10000, {v(vK0)}\nv_add_u32 {v(vK3)}, 0x10000, {v(vK1)}")
    E(f"v_lshlrev_b32 {v(vQr)}, 4, {v(vLane)}\nv_add_u32 {v(vQr)}, {QB}, {v(vQr)}")
    E(f"s_lshr_b32 {s(sH)}, {s(sW)}, 1")
    cb = struct.unpack('<I', struct.pack('<f', math.log2(math.e) / 16.0))[0]
    E(f"s_mov_b32 {s(sC)}, {cb:#x}\ns_mov_b32 {s(sC+1)}, {cb:#x}")
    E(f"s_mul_i32 {s(sT0)}, {s(sB)}, 14336\ns_lshl_b32 {s(sT1)}, {s(sW)}, 9\ns_add_u32 {s(sT0)}, {s(sT0)}, {s(sT1)}\nv_lshl_add_u32 {v(vPf)}, {v(vLane)}, 7, {s(sT0)}")
    E.wait_vm(0)
    E.barrier("x")
    def pf_wo(p):
        E(f"s_mov_b32 {s(sOff)}, {p*2048}\ns_mov_b64 exec, 15")
        E(f"buffer_load_dword {v(vSw)}, {v(vPf)}, {s(sWo, 4)}, {s(sOff)} offen\ns_mov_b64 exec, -1")
        E.vm[-1] = (None, set())
    def leader(lab):
        E(f"s_lshl_b32 {s(sT0)}, {s(sW)}, 3\ns_or_b32 {s(sT0)}, {s(sT0)}, {s(sHk)}\ns_cmp_lg_u32 {s(sT0)}, 7\ns_cbranch_scc1 {lab}")
    def inbox_init():
        E(f"s_mov_b32 {s(sOut)}, s16\ns_and_b32 {s(sOut+1)}, s17, 0xffff\ns_mov_b32 {s(sOut+2)}, 256\ns_mov_b32 {s(sOut+3)}, 0x20000")
        E(f"v_lshlrev_b32 {v(vA)}, 4, {v(vLane)}\ns_lshl_b32 {s(sT1)}, {s(sB)}, 3\nv_mov_b32 {v(vB2)}, {s(sT1)}\nv_mov_b32 {v(vM)}, 1")
        for i in range(4): E(f"v_mov_b32 {v(KF+i)}, 0")
        leader("L_ib0")
        for i in range(-(-(224 << cfg.fsh) // 1024)): E(f"s_mov_b32 {s(sOff)}, {1024*i}\nbuffer_store_dwordx4 {v(KF, 4)}, {v(vA)}, {s(sDbg, 4)}, {s(sOff)} offen sc1")
        E.label("L_ib0")
    def inbox_ready():
        leader("L_ib1")
        E(f"s_waitcnt vmcnt(0)\ns_mov_b64 exec, 1")
        E(f"buffer_store_dword {v(vM)}, {v(vB2)}, {s(sOut, 4)}, 0 offen sc1\ns_mov_b64 exec, -1")
        E.label("L_ib1")
    def inbox_check_issue():
        E(f"s_cmp_lg_u32 {s(sW)}, 0\ns_cbranch_scc1 L_ib2\ns_mov_b64 exec, 1")
        E(f"buffer_load_dword {v(vM+1)}, {v(vB2)}, {s(sOut, 4)}, 0 offen sc1\ns_mov_b64 exec, -1")
        E.label("L_ib2")
        E.vm = []
    def inbox_check():
        E(f"s_cmp_lg_u32 {s(sW)}, 0\ns_cbranch_scc1 L_ib3\ns_mov_b64 exec, 1")
        E.label("L_ib4")
        E(f"s_waitcnt vmcnt(0)\nv_cmp_ne_u32 vcc, 1, {v(vM+1)}\ns_cbranch_vccz L_ib5")
        E(f"buffer_load_dword {v(vM+1)}, {v(vB2)}, {s(sOut, 4)}, 0 offen sc1")
        E(f"s_sub_u32 {s(sSpin)}, {s(sSpin)}, 1\ns_cbranch_scc1 L_end\ns_branch L_ib4")
        E.label("L_ib5")
        E("s_mov_b64 exec, -1")
        E.label("L_ib3")
        E.vm = []
    def qk(p, hooks={}, fill=None):
        sl = kslot(p); half = p & 1
        items = [(kt, ss) for kt in range(8) for ss in range(2)]
        def rd(n):
            kt, ss = items[n]
            a = (vK2 if sl >= 65536 else vK0) + ss
            E(f"ds_read_b128 {v(KF + 4*(n % NKF), 4)}, {v(a)} offset:{(sl % 65536) + kt*2048}")
        for n in range(NKF): rd(n)
        for n, (kt, ss) in enumerate(items):
            for t in range(3):
                acc = v(S(half*8 + kt, t), 4)
                E(f"{MF} {acc}, {v(KF + 4*(n % NKF), 4)}, {v(QF + (ss*3+t)*4, 4)}, {acc if (p >= 2 or ss) else 0}")
                if fill: fill(n, t)
            if n + NKF < 16: rd(n + NKF)
            if n in hooks: hooks[n]()
    def readq(p):
        E.cond_begin()
        E(f"s_cmp_lg_u32 {s(sH)}, {p & 1}\ns_cbranch_scc1 L_q{p}")
        for i in range(6): E(f"ds_read_b128 {v(QF + 4*i, 4)}, {v(vQr)} offset:{i*1024}")
        E.label(f"L_q{p}")
        E.cond_end()
    for p in range(7):
        E.barrier(f"1_{p}")
        if p and not p & 1: readq(p - 1)
        if p >= 2: qk(p - 2, {cfg.b2q - 1: lambda: E.barrier(f"2_{p}")})
        else: E.barrier(f"2_{p}")
        if p & 1: readq(p - 1)
        E.wait_lgkm(0)
        E.barrier(f"4_{p}")
        if p == 0: inbox_init()
        if p == cfg.rdy: inbox_ready()
        if p == 4: inbox_check_issue()
        if p == 5: inbox_check()
        if cfg.pf_w: pf_wo(p)
    qk(5, {cfg.b17 - 1: lambda: E.barrier("1_7")})
    readq(6); E.wait_lgkm(0)
    E.barrier("2_7"); E.barrier("3_7")
    E.wait_vm(0, force=True)
    MX = [vA, vB2, vSw]
    def mx(T, t, k):
        a = S(T, t, 2*k)
        if T == 0 and k == 0: E(f"v_max_f32 {v(MX[t])}, {v(a)}, {v(a+1)}")
        else: E(f"v_max3_f32 {v(MX[t])}, {v(a)}, {v(a+1)}, {v(MX[t])}")
    def filler(base):
        def f(n, t):
            m = base + n - 4
            if m >= 0: mx(m >> 1, t, m & 1)
        return f
    readq(7); qk(6, fill=filler(0))
    E.barrier("5_7")
    qk(7, fill=filler(16))
    LA = QF; ON = QF + 12
    NM = [QF + 16, QF + 18, QF + 20]
    for m in range(28, 32):
        for t in range(3): mx(m >> 1, t, m & 1)
    TM = [KF, KF+1, KF+2]
    for op in ("v_permlane32_swap_b32", "v_permlane16_swap_b32"):
        for t in range(3): E(f"v_mov_b32 {v(TM[t])}, {v(MX[t])}")
        for t in range(3): E(f"{op} {v(MX[t])}, {v(TM[t])}")
        for t in range(3): E(f"v_max_f32 {v(MX[t])}, {v(MX[t])}, {v(TM[t])}")
    for t in range(3): E(f"v_mul_f32 {v(NM[t])}, {s(sC)}, {v(MX[t])}")
    for i in range(4): E(f"v_mov_b32 {v(ON+i)}, 0x3f803f80")
    E.stamp("max")
    pend = []
    for u in range(8):
        for t in range(3):
            a, b = S(2*u, t), S(2*u+1, t)
            for r in (a, a+2, b, b+2):
                E(f"v_pk_fma_f32 {v(r, 2)}, {v(r, 2)}, {s(sC, 2)}, {v(NM[t], 2)} op_sel_hi:[1,1,0] neg_lo:[0,0,1] neg_hi:[0,0,1]")
            for x in pend: E(x)
            for r in list(range(a, a+4)) + list(range(b, b+4)): E(f"v_exp_f32 {v(r)}, {v(r)}")
            E(f"v_cvt_pk_bf16_f32 {v(a)}, {v(a)}, {v(a+1)}")
            E(f"v_cvt_pk_bf16_f32 {v(a+1)}, {v(a+2)}, {v(a+3)}")
            E(f"v_cvt_pk_bf16_f32 {v(a+2)}, {v(b)}, {v(b+1)}")
            E(f"v_cvt_pk_bf16_f32 {v(a+3)}, {v(b+2)}, {v(b+3)}")
            pend = [f"{MF} {v(LA+4*t, 4)}, {v(ON, 4)}, {v(a, 4)}, {v(LA+4*t, 4) if u else 0}"]
    for x in pend: E(x)
    VA = [vK0, vK1, vK2, vK3]; VB = [KF+16, KF+17, KF+18, KF+19]
    vSt, vXw, vXr = KF+20, KF+21, KF+22
    tr_base(E, vA, vLane, vB2, vT, 1024)
    E(f"s_and_b32 {s(sT0)}, {s(sW)}, 1\ns_lshl_b32 {s(sT1)}, {s(sT0)}, 14\ns_lshl_b32 {s(sT0)}, {s(sT0)}, 6")
    E(f"v_xor_b32 {v(vA)}, {s(sT0)}, {v(vA)}\nv_add_u32 {v(vA)}, {s(sT1)}, {v(vA)}")
    for d in range(4):
        E(f"v_xor_b32 {v(VA[d])}, {d*32}, {v(vA)}\nv_add_u32 {v(VB[d])}, 0x10000, {v(VA[d])}")
    def later():
        E(f"v_and_b32 {v(vA)}, 15, {v(vLane)}\nv_lshlrev_b32 {v(vA)}, 3, {v(vA)}")
        E(f"s_mul_i32 {s(sT0)}, {s(sW)}, 384\ns_add_u32 {s(sT0)}, {s(sT0)}, {ST}\nv_add_u32 {v(vB2)}, {s(sT0)}, {v(vA)}")
        E(f"s_xor_b32 {s(sT1)}, {s(sW)}, 1\ns_mul_i32 {s(sT0)}, {s(sT1)}, 384\ns_add_u32 {s(sT0)}, {s(sT0)}, {ST}\nv_add_u32 {v(vSt)}, {s(sT0)}, {v(vA)}")
        E(f"v_lshlrev_b32 {v(vA)}, 4, {v(vLane)}")
        E(f"s_mul_i32 {s(sT0)}, {s(sW)}, 6144\ns_add_u32 {s(sT0)}, {s(sT0)}, {XR}\nv_add_u32 {v(vXw)}, {s(sT0)}, {v(vA)}")
        E(f"s_mul_i32 {s(sT0)}, {s(sT1)}, 6144\ns_add_u32 {s(sT0)}, {s(sT0)}, {XR}\nv_add_u32 {v(vXr)}, {s(sT0)}, {v(vA)}")
        for t in range(3): E(f"v_mov_b32 {v(NM[t]+1)}, {v(LA+4*t)}")
    def stat_w():
        for t in range(3): E(f"ds_write_b64 {v(vB2)}, {v(NM[t], 2)} offset:{t*128}")
    E.stamp("smax")
    def OA(d, t, r=0): return S(2*d + 1, t, r)
    def PT(i): return S(9 + 2*(i // 3), i % 3)
    VF = [S(13, 0), S(13, 1), S(13, 2), S(15, 0), S(15, 1), S(15, 2), KF, KF+4]
    NVF = 7
    FS = [QF, QF + 2, QF + 4]
    def stat_r():
        for t in range(3): E(f"ds_read_b64 {v(PT(t), 2)}, {v(vSt)} offset:{t*128}")
    def stat_c(t):
        pm, pl, mxx, eo = PT(t), PT(t)+1, PT(t)+2, PT(t)+3
        E(f"v_max_f32 {v(mxx)}, {v(pm)}, {v(NM[t])}")
        E(f"v_sub_f32 {v(eo)}, {v(NM[t])}, {v(mxx)}\nv_sub_f32 {v(pm)}, {v(pm)}, {v(mxx)}")
        E(f"v_exp_f32 {v(eo)}, {v(eo)}\nv_exp_f32 {v(pm)}, {v(pm)}")
        E(f"v_mul_f32 {v(mxx)}, {v(eo)}, {v(NM[t]+1)}\nv_fmac_f32 {v(mxx)}, {v(pm)}, {v(pl)}")
        E(f"v_rcp_f32 {v(mxx)}, {v(mxx)}")
        E(f"v_mul_f32 {v(FS[t])}, {v(eo)}, {v(mxx)}")
    def pv(q):
        half = q & 1; p = 8 + q
        ad = VB if vslot(q) >= 65536 else VA
        items = [(d, ks) for d in (2, 3, 0, 1) for ks in range(4)]
        def rd(n):
            d, ks = items[n]
            for hf in range(2):
                E(f"ds_read_b64_tr_b16 {v(VF[n % NVF] + 2*hf, 2)}, {v(ad[d])} offset:{ks*4096 + hf*2048}")
        def send(k):
            d, t = 2 + k // 3, k % 3
            a = OA(d, t)
            for r in (a, a+2): E(f"v_pk_mul_f32 {v(r, 2)}, {v(r, 2)}, {v(FS[t], 2)} op_sel_hi:[1,0]")
            E(f"ds_write_b128 {v(vXw)}, {v(a, 4)} offset:{k*1024}")
        if q == 1: stat_r()
        for n in range(NVF): rd(n)
        if q == 0: later()
        ns = 0
        for n, (d, ks) in enumerate(items):
            for t in range(3):
                acc = v(OA(d, t), 4)
                E(f"{MF} {acc}, {v(VF[n % NVF], 4)}, {v(S(2*(half*4+ks), t), 4)}, {acc if (half or ks) else 0}")
            if n + NVF < 16: rd(n + NVF)
            if q == 0 and n == 8: stat_w()
            if q == 0 and n == cfg.b48 - 1:
                E.wait_lgkm(0); E.barrier("4_8")
            if q == 1 and n < 3: stat_c(n)
            if q and n == (cfg.b1o if half else cfg.b1e) - 1: E.barrier(f"1_{p}")
            if q and not half and n == cfg.b2e - 1: E.barrier(f"2_{p}")
            if half and n >= max(8, cfg.b1o - 1) and ns < 6: send(ns); ns += 1
        if half:
            while ns < 6: send(ns); ns += 1
            E.wait_lgkm(0)
            E.barrier(f"2_{p}")
            for i in range(6): E(f"ds_read_b128 {v(PT(i), 4)}, {v(vXr)} offset:{i*1024}")
            for t in range(3):
                for d in range(2):
                    a, b = OA(d, t), PT(d*3+t)
                    for r in (0, 2): E(f"v_pk_fma_f32 {v(a+r, 2)}, {v(a+r, 2)}, {v(FS[t], 2)}, {v(b+r, 2)} op_sel_hi:[1,0,1]")
                    o = OA(0, t) + 2*d
                    E(f"v_cvt_pk_bf16_f32 {v(o)}, {v(a)}, {v(a+1)}\nv_cvt_pk_bf16_f32 {v(o+1)}, {v(a+2)}, {v(a+3)}")
                E(f"ds_write_b128 {v(vXr)}, {v(OA(0, t), 4)} offset:{t*1024}")
            E.wait_lgkm(0)
            E.barrier(f"3_{p}")
    for q in range(8):
        if q == 0: E.wait('P', "Wl8")
        elif q > 1: E.barrier(f"4_{7+q}")
        pv(q)
    if cfg.pdelay: E.barrier("D")
    if cfg.rot: E(f"s_sub_u32 {s(sH)}, {s(sHk)}, {s(sB)}\ns_and_b32 {s(sH)}, {s(sH)}, 7")
    else: E(f"s_mov_b32 {s(sH)}, {s(sHk)}")
    E(f"s_cmp_eq_u32 {s(sH)}, 7\ns_cbranch_scc1 L_finA")
    v4, v2, vF, vO1, vO2 = vK0, vK1, vK2, vK3, vQr
    E(f"s_lshl_b32 {s(sT0)}, {s(sH)}, 5\ns_add_u32 {s(sT0)}, {s(sT0)}, {s(sW)}\ns_mul_i32 {s(sT0)}, {s(sT0)}, {SLAB}")
    E(f"v_lshl_add_u32 {v(v4)}, {v(vLane)}, 4, {s(sT0)}\nv_lshl_add_u32 {v(v2)}, {v(vLane)}, 3, {s(sT0)}")
    E(f"s_lshl_b32 {s(sT0)}, {s(sH)}, 2\ns_add_u32 {s(sT0)}, {s(sT0)}, {s(sW)}\ns_lshl_b32 {s(sT0)}, {s(sT0)}, {3 + cfg.fsh}\nv_lshl_add_u32 {v(vF)}, {v(vLane)}, {cfg.fsh}, {s(sT0)}")
    E(f"s_mul_i32 {s(sT3)}, {s(sB)}, 43008")
    E(f"s_add_u32 {s(sOut)}, s14, {s(sT3)}\ns_addc_u32 {s(sOut+1)}, s15, 0\ns_and_b32 {s(sOut+1)}, {s(sOut+1)}, 0xffff")
    E(f"s_mov_b32 {s(sOut+2)}, 43008\ns_mov_b32 {s(sOut+3)}, 0x20000")
    E(f"s_lshl_b32 {s(sT0)}, {s(sH)}, 7\ns_lshl_b32 {s(sT1)}, {s(sW)}, 5\ns_add_u32 {s(sT0)}, {s(sT0)}, {s(sT1)}")
    E(f"v_and_b32 {v(vA)}, 31, {v(vLane)}\nv_mul_u32_u24 {v(vO1)}, 896, {v(vA)}\nv_lshrrev_b32 {v(vA)}, 5, {v(vLane)}\nv_lshl_add_u32 {v(vO1)}, {v(vA)}, 4, {v(vO1)}\nv_add_u32 {v(vO1)}, {s(sT0)}, {v(vO1)}")
    E(f"s_add_u32 {s(sT0)}, {s(sT0)}, {32*896}")
    E(f"v_and_b32 {v(vA)}, 15, {v(vLane)}\nv_mul_u32_u24 {v(vO2)}, 896, {v(vA)}\nv_lshrrev_b32 {v(vA)}, 4, {v(vLane)}\nv_lshl_add_u32 {v(vO2)}, {v(vA)}, 3, {v(vO2)}\nv_add_u32 {v(vO2)}, {s(sT0)}, {v(vO2)}")
    E("s_mov_b64 exec, 0xff")
    E.label("L_poll")
    if cfg.psleep: E(f"s_sleep {cfg.psleep}")
    if cfg.ppol == 'atomic': E(f"v_mov_b32 {v(vA)}, 0\nbuffer_atomic_or {v(vA)}, {v(vF)}, {s(sDbg, 4)}, 0 offen sc0")
    else: E(f"buffer_load_dword {v(vA)}, {v(vF)}, {s(sDbg, 4)}, 0 offen {cfg.ppol}")
    E(f"s_sub_u32 {s(sSpin)}, {s(sSpin)}, 1\ns_cbranch_scc1 L_end")
    E(f"s_waitcnt vmcnt(0)\nv_cmp_ne_u32 vcc, 1, {v(vA)}\ns_cbranch_vccnz L_poll")
    E("s_mov_b64 exec, -1")
    E.stamp("flags")
    D = S0; acc = S0 + 64; tm = S0 + 80
    for k in range(8):
        E(f"s_mov_b32 {s(sOff)}, {k*4*SLAB}")
        E(f"buffer_load_dwordx4 {v(D + 8*k, 4)}, {v(v4)}, {s(sWs, 4)}, {s(sOff)} offen sc1")
        E(f"buffer_load_dwordx2 {v(D + 8*k + 4, 2)}, {v(v2)}, {s(sWs, 4)}, {s(sOff)} offen offset:1024 sc1")
    for k in range(8):
        for i in range(6):
            r = D + 8*k + i
            if k == 0: E(f"v_lshlrev_b32 {v(acc+2*i)}, 16, {v(r)}\nv_and_b32 {v(acc+2*i+1)}, 0xffff0000, {v(r)}")
            else:
                E(f"v_lshlrev_b32 {v(tm)}, 16, {v(r)}\nv_and_b32 {v(tm+1)}, 0xffff0000, {v(r)}")
                E(f"v_pk_add_f32 {v(acc+2*i, 2)}, {v(acc+2*i, 2)}, {v(tm, 2)}")
    for i in range(6): E(f"v_cvt_pk_bf16_f32 {v(tm+4+i)}, {v(acc+2*i)}, {v(acc+2*i+1)}")
    E(f"v_permlane16_swap_b32 {v(tm+4)}, {v(tm+6)}\nv_permlane16_swap_b32 {v(tm+5)}, {v(tm+7)}")
    E(f"buffer_store_dwordx2 {v(tm+8, 2)}, {v(vO2)}, {s(sOut, 4)}, 0 offen {cfg.outpol}")
    E(f"buffer_store_dwordx4 {v(tm+4, 4)}, {v(vO1)}, {s(sOut, 4)}, 0 offen {cfg.outpol}")
    E.label("L_finA")
    dump_stamps(E, cfg, vLane, vA)
    E("s_endpgm")
    E.label("L_last")
    return E

HEADER = open("cdna_kernels/" + NAME + ".s.ref").read().split("; Override launch")[0] if __name__ == "__main__" or True else ""

def kd(name, vg, sg):
    return f""".p2align 6
.amdhsa_kernel {name}
  .amdhsa_next_free_vgpr {vg}
  .amdhsa_next_free_sgpr {sg}
  .amdhsa_accum_offset {(vg + 3) // 4 * 4}
  .amdhsa_group_segment_fixed_size 0
  .amdhsa_kernarg_size 64
  .amdhsa_user_sgpr_count 2
  .amdhsa_user_sgpr_kernarg_segment_ptr 1
  .amdhsa_system_sgpr_workgroup_id_x 1
  .amdhsa_float_denorm_mode_32 3
.end_amdhsa_kernel
"""

def gen_reduce():
    E = Stream()
    E("s_cmp_ge_u32 s2, 336\ns_cbranch_scc1 L_rend")
    E("s_load_dwordx2 s[4:5], s[0:1], 40\ns_load_dwordx2 s[6:7], s[0:1], 56")
    E("v_lshl_add_u32 v1, s2, 8, v0")
    E(f"s_mov_b32 s16, {-(-(1 << 32) // 2688)}\nv_mul_hi_u32 v2, v1, s16")
    E(f"s_mov_b32 s17, {7*43008}\nv_mul_lo_u32 v2, v2, s17")
    E("v_lshlrev_b32 v1, 4, v1\nv_add_u32 v2, v2, v1")
    E("s_waitcnt lgkmcnt(0)")
    E(f"s_mov_b32 s8, s4\ns_and_b32 s9, s5, 0xffff\ns_mov_b32 s10, {32*43008}\ns_mov_b32 s11, 0x20000")
    E(f"s_mov_b32 s12, s6\ns_and_b32 s13, s7, 0xffff\ns_mov_b32 s14, {256*43008}\ns_mov_b32 s15, 0x20000")
    for h in range(8):
        E(f"s_mov_b32 s16, {h*43008}\nbuffer_load_dwordx4 {v(8+4*h, 4)}, v2, s[12:15], s16 offen")
    for h in range(8):
        for i in range(4):
            r = 8 + 4*h + i
            if h == 0: E(f"v_lshlrev_b32 {v(40+2*i)}, 16, {v(r)}\nv_and_b32 {v(41+2*i)}, 0xffff0000, {v(r)}")
            else:
                E(f"v_lshlrev_b32 v3, 16, {v(r)}\nv_and_b32 v4, 0xffff0000, {v(r)}")
                E(f"v_add_f32 {v(40+2*i)}, {v(40+2*i)}, v3\nv_add_f32 {v(41+2*i)}, {v(41+2*i)}, v4")
    for i in range(4): E(f"v_cvt_pk_bf16_f32 {v(48+i)}, {v(40+2*i)}, {v(41+2*i)}")
    E("buffer_store_dwordx4 v[48:51], v1, s[8:11], 0 offen")
    E.label("L_rend"); E("s_endpgm")
    return E

def gen(cfg):
    ids = {}
    for _ in range(2):
        P = gen_proj(cfg, ids); A = gen_attn(cfg, ids)
    check_deadlock(P, A, ids)
    H = Stream()
    H("s_cmp_ge_u32 s2, 256\ns_cbranch_scc0 L_go")
    H.label("L_end"); H("s_endpgm"); H.label("L_go")
    if cfg.echo: H("s_memrealtime s[70:71]")
    H("s_load_dwordx16 s[4:19], s[0:1], 0")
    H(f"v_lshrrev_b32 v1, 6, v0\ns_lshr_b32 {s(sB)}, s2, 3\ns_and_b32 {s(sH)}, s2, 7\nv_readfirstlane_b32 {s(sW)}, v1")
    H(f"s_mov_b32 {s(sSpin)}, 0x100000")
    if cfg.stamps:
        H(f"v_mov_b32 v11, 0\ns_memrealtime {s(sSt, 2)}\ns_waitcnt lgkmcnt(0)\nv_writelane_b32 v11, {s(sSt)}, 62")
        H(f"s_memtime {s(sSt, 2)}\ns_waitcnt lgkmcnt(0)\nv_writelane_b32 v11, {s(sSt)}, 61")
    H(f"s_lshl_b32 {s(sT0)}, s2, 18")
    H(f"s_mul_i32 {s(sT1)}, {s(sB)}, 43008\ns_lshl_b32 {s(sT2)}, {s(sH)}, 10\ns_mul_i32 {s(sT3)}, {s(sH)}, 458752")
    for d in (sX, sK, sV, sWq, sWo, sWs): H(f"s_mov_b32 {s(d+3)}, 0x20000")
    H(f"s_mov_b32 {s(sX+2)}, 43008\ns_mov_b32 {s(sK+2)}, 262144\ns_mov_b32 {s(sV+2)}, 262144")
    H(f"s_sub_u32 {s(sWq+2)}, 3670016, {s(sT2)}\ns_mov_b32 {s(sWo+2)}, 458752\ns_mov_b32 {s(sWs+2)}, {8*43008}")
    H(f"s_mul_i32 {s(sOff)}, {s(sB)}, {8*43008}\ns_mov_b32 {s(sHk)}, {s(sH)}")
    H("s_waitcnt lgkmcnt(0)")
    for d, src, off in ((sK, 6, sT0), (sX, 4, sT1), (sWq, 10, sT2), (sV, 8, sT0), (sWo, 12, sT3), (sWs, 18, sOff)):
        H(f"s_add_u32 {s(d)}, {s(src)}, {s(off)}\ns_addc_u32 {s(d+1)}, {s(src+1)}, 0\ns_and_b32 {s(d+1)}, {s(d+1)}, 0xffff")
    if cfg.fused == 1:
        H(f"s_mov_b32 {s(sDbg)}, s16\ns_and_b32 {s(sDbg+1)}, s17, 0xffff\ns_mov_b32 {s(sDbg+2)}, 256\ns_mov_b32 {s(sDbg+3)}, 0x20000")
    if cfg.fused == 2:
        H(f"s_lshl_b32 {s(sOff)}, {s(sB)}, {8 + cfg.fsh}\ns_add_u32 {s(sOff)}, {s(sOff)}, {IB_OFF}")
        H(f"s_add_u32 {s(sDbg)}, s18, {s(sOff)}\ns_addc_u32 {s(sDbg+1)}, s19, 0\ns_and_b32 {s(sDbg+1)}, {s(sDbg+1)}, 0xffff\ns_mov_b32 {s(sDbg+2)}, {224 << cfg.fsh}\ns_mov_b32 {s(sDbg+3)}, 0x20000")
    H(f"s_cmp_lt_u32 {s(sW)}, 4\ns_cbranch_scc1 L_attn")
    out = [HEADER.rstrip()]
    if cfg.fused: out.append("; @launch grid=(256,1,1) block=(512,1,1) lds=163840")
    else:
        out.append(f"; @launch kernel={NAME}_kernel grid=(256,1,1) block=(512,1,1) lds=163840")
        out.append(f"; @launch kernel=gqa_reduce_kernel grid=(336,1,1) block=(256,1,1) lds=0")
    out.append('.amdgcn_target "amdgcn-amd-amdhsa--gfx950"\n.text')
    out.append(f".globl {NAME}_kernel\n.p2align 8\n.type {NAME}_kernel,@function\n{NAME}_kernel:")
    out += [H.text(), P.text(), ".p2align 6\nL_attn:", A.text()]
    if not cfg.fused:
        out.append(".globl gqa_reduce_kernel\n.p2align 8\n.type gqa_reduce_kernel,@function\ngqa_reduce_kernel:")
        out.append(gen_reduce().text())
    out.append('.section .rodata,"a"')
    out.append(kd(NAME + "_kernel", 256, 102))
    if not cfg.fused: out.append(kd("gqa_reduce_kernel", 56, 32))
    return "\n".join(out), P.stn, A.stn

if __name__ == "__main__":
    kw = eval("dict(" + (sys.argv[2] if len(sys.argv) > 2 else "") + ")")
    txt, _, _ = gen(Cfg(**kw))
    open(sys.argv[1], "w").write(txt)
```
